```python
import torch

def _softmax(x, axis=-1):
    return torch.softmax(x, dim=axis)
def _gelu(x):
    return torch.nn.functional.gelu(x, approximate="tanh")
def _silu(x):
    return torch.nn.functional.silu(x)
def _sigmoid(x):
    return torch.sigmoid(x)
def _layernorm(x, axis=-1, eps=1e-5):
    m = x.mean(dim=axis, keepdim=True)
    v = x.var(dim=axis, keepdim=True, unbiased=False)
    return (x - m) / torch.sqrt(v + eps)
def _scatter_add(tgt, idx, src, axis=0):
    return tgt.clone().index_add_(axis, idx, src)
def _segment_sum(src, seg, n):
    out = torch.zeros((n,) + src.shape[1:], dtype=src.dtype)
    return out.index_add_(0, seg, src)
def _pad(x, pw):
    flat = tuple(v for pair in reversed(pw) for v in pair)
    return torch.nn.functional.pad(x, flat)

kernel_name = 'concat_heads__mha_block_cached__gqa_block_cached__near_ridge'

def setup_inputs():

    _w = (lambda a: (lambda t: t.to(torch.bfloat16) if t.is_floating_point() else t)(torch.as_tensor(a)))
    def _A_setup():
        B, Sq, D = 8, 128, 1024
        H, Sk, Dh = 32, 512, 128
        return {
            "x": _w((lambda *s: torch.randn(*s, dtype=torch.bfloat16) * 0.8)(B, Sq, D)),
            "k_cache": _w((lambda *s: torch.randn(*s, dtype=torch.bfloat16) * 0.8)(B, H, Sk, Dh)),
            "v_cache": _w((lambda *s: torch.randn(*s, dtype=torch.bfloat16) * 0.05)(B, H, Sk, Dh)),
            "wq": _w((lambda *s: torch.randn(*s, dtype=torch.bfloat16) * 0.8)(D, H * Dh) * (D ** -0.5)),
            "wo": _w((lambda *s: torch.randn(*s, dtype=torch.bfloat16) * 0.05)(H * Dh, D) * ((H * Dh) ** -0.5)),
        }
    _A_in = _A_setup()

    def _B_setup():
        B, Sq, D = 8, 128, 1024
        Hq, Hkv, Sk, Dh = 32, 32, 512, 128
        assert Hq % Hkv == 0, (Hq, Hkv)
        return {
            "x": _w((lambda *s: torch.randn(*s, dtype=torch.bfloat16) * 0.8)(B, Sq, D)),
            "k_cache": _w((lambda *s: torch.randn(*s, dtype=torch.bfloat16) * 0.8)(B, Hkv, Sk, Dh)),
            "v_cache": _w((lambda *s: torch.randn(*s, dtype=torch.bfloat16) * 0.05)(B, Hkv, Sk, Dh)),
            "wq": _w((lambda *s: torch.randn(*s, dtype=torch.bfloat16) * 0.8)(D, Hq * Dh) * (D ** -0.5)),
            "wo": _w((lambda *s: torch.randn(*s, dtype=torch.bfloat16) * 0.05)(Hq * Dh, D) * ((Hq * Dh) ** -0.5)),
        }
    _B_in = _B_setup()

    return {
        "A_x": _A_in["x"],
        "A_k_cache": _A_in["k_cache"],
        "A_v_cache": _A_in["v_cache"],
        "A_wq": _A_in["wq"],
        "A_wo": _A_in["wo"],
        "B_x": _B_in["x"],
        "B_k_cache": _B_in["k_cache"],
        "B_v_cache": _B_in["v_cache"],
        "B_wq": _B_in["wq"],
        "B_wo": _B_in["wo"],
    }

def reference(A_x, A_k_cache, A_v_cache, A_wq, A_wo, B_x, B_k_cache, B_v_cache, B_wq, B_wo):
    def _A_ref(x, k_cache, v_cache, wq, wo):
        B, Sq, D = x.shape
        H, Dh = 32, 128
        q = (lambda x, *d: x.permute(*d))((x @ wq).reshape(B, Sq, H, Dh), 0, 2, 1, 3)
        scores = torch.einsum("bhqd,bhkd->bhqk", q, k_cache) * (Dh ** -0.5)
        p = _softmax(scores, axis=-1)
        o = torch.einsum("bhqk,bhkd->bhqd", p, v_cache)
        return (lambda x, *d: x.permute(*d))(o, 0, 2, 1, 3).reshape(B, Sq, H * Dh) @ wo

    def _B_ref(x, k_cache, v_cache, wq, wo):
        B, Sq, D = x.shape
        Hq, Dh = 32, 128
        Hkv = k_cache.shape[1]
        rep = Hq // Hkv
        q = (lambda x, *d: x.permute(*d))((x @ wq).reshape(B, Sq, Hq, Dh), 0, 2, 1, 3)
        k = (lambda x, n, axis: torch.repeat_interleave(x, n, dim=axis))(k_cache, rep, axis=1)
        v = (lambda x, n, axis: torch.repeat_interleave(x, n, dim=axis))(v_cache, rep, axis=1)
        scores = torch.einsum("bhqd,bhkd->bhqk", q, k) * (Dh ** -0.5)
        p = _softmax(scores, axis=-1)
        o = torch.einsum("bhqk,bhkd->bhqd", p, v)
        return (lambda x, *d: x.permute(*d))(o, 0, 2, 1, 3).reshape(B, Sq, Hq * Dh) @ wo

    a = _A_ref(A_x, A_k_cache, A_v_cache, A_wq, A_wo)
    b = _B_ref(B_x, B_k_cache, B_v_cache, B_wq, B_wo)
    return torch.concatenate([a, b], axis=-1)
```

```python
import sys
sys.path.insert(0, "tools")
NAME = "concat_heads__mha_block_cached__gqa_block_cached__near_ridge"

HEAD = """; @launch grid=({grid},1,1) block=({nt},1,1) lds={lds}
.amdgcn_target "amdgcn-amd-amdhsa--gfx950"
.text
.globl {n}_kernel
.p2align 8
.type {n}_kernel,@function
{n}_kernel:
"""
TAIL = """
s_endpgm
.section .rodata,"a"
.p2align 6
.amdhsa_kernel {n}_kernel
  .amdhsa_next_free_vgpr {vg}
  .amdhsa_next_free_sgpr 102
  .amdhsa_accum_offset {ao}
  .amdhsa_group_segment_fixed_size 0
  .amdhsa_kernarg_size 104
  .amdhsa_user_sgpr_count 2
  .amdhsa_user_sgpr_kernarg_segment_ptr 1
  .amdhsa_system_sgpr_workgroup_id_x 1
.end_amdhsa_kernel
"""

def gen(streams, nt=256, depth=15, iters=None, active_mask=None, grid=256):
    nw = nt // 64
    L = []
    a = L.append
    a("s_load_dwordx2 s[4:5], s[0:1], 96")
    a("s_load_dwordx2 s[6:7], s[0:1], 88")
    a("s_memrealtime s[40:41]")
    a("s_waitcnt lgkmcnt(0)")
    if active_mask is not None:
        a(f"s_and_b32 s3, s2, 7")
        a(f"s_lshl_b32 s3, 1, s3")
        a(f"s_and_b32 s3, s3, {active_mask}")
        a("s_cbranch_scc0 L_end")
    a("s_mov_b32 s8, s4"); a("s_mov_b32 s9, s5"); a("s_mov_b32 s10, 0x10000000"); a("s_mov_b32 s11, 0x00020000")
    a("s_mov_b32 s12, s6"); a("s_mov_b32 s13, s7"); a("s_mov_b32 s14, 65536"); a("s_mov_b32 s15, 0x00020000")
    a("v_lshrrev_b32 v1, 6, v0"); a("s_nop 0"); a("v_readfirstlane_b32 s16, v1")
    a("v_lshlrev_b32 v2, 4, v0")
    for r in range(4, 8): a(f"v_mov_b32 v{r}, v0")
    a("s_lshl_b32 s17, s16, 14")
    for i, st in enumerate(streams):
        a(f"s_and_b32 s3, s2, {st['mod']-1}")
        a(f"s_lshr_b32 s3, s3, {st['div'].bit_length()-1}")
        a(f"s_mul_i32 s3, s3, {st['bytes']}")
        a(f"s_add_u32 s{20+i}, s3, {st['base']}")
    step = nt * 16
    n_it = None
    for st in streams:
        k = st['bytes'] // (step * st['per'])
        assert k * step * st['per'] == st['bytes']
        assert n_it is None or n_it == k, (n_it, k)
        n_it = k
    tot = sum(st['per'] for st in streams)
    unroll = max(1, 16 // tot)
    while n_it % unroll: unroll -= 1
    a(f"s_mov_b32 s18, {n_it // unroll}")
    a(".p2align 3")
    a("L_loop:")
    slot = 0
    for u in range(unroll):
        for i, st in enumerate(streams):
            for p in range(st['per']):
                if st['kind'] == 'r':
                    a(f"s_add_u32 m0, s17, {(slot % 16) * 1024}")
                    a(f"s_nop 0")
                    a(f"buffer_load_dwordx4 v2, s[8:11], s{20+i} offen {st['flags']} lds")
                elif st['kind'] == 'v':
                    a(f"buffer_load_dwordx4 v[{8+4*(slot%16)}:{11+4*(slot%16)}], v2, s[8:11], s{20+i} offen {st['flags']}")
                else:
                    a(f"buffer_store_dwordx4 v[4:7], v2, s[8:11], s{20+i} offen {st['flags']}")
                a(f"s_add_u32 s{20+i}, s{20+i}, {step}")
                a(f"s_waitcnt vmcnt({depth})")
                slot += 1
    a("s_sub_u32 s18, s18, 1")
    a("s_cmp_lg_u32 s18, 0")
    a("s_cbranch_scc1 L_loop")
    a("s_waitcnt vmcnt(0)")
    a("s_barrier")
    a("s_memrealtime s[42:43]")
    a("s_waitcnt lgkmcnt(0)")
    a("v_mov_b32 v4, s40"); a("v_mov_b32 v5, s41"); a("v_mov_b32 v6, s42"); a("v_mov_b32 v7, s43")
    a("s_lshl_b32 s3, s2, 4")
    a("v_mov_b32 v3, s3")
    a("v_cmp_eq_u32 vcc, 0, v0")
    a("s_and_saveexec_b64 s[30:31], vcc")
    a("s_cbranch_execz L_end")
    a("buffer_store_dwordx4 v[4:7], v3, s[12:15], 0 offen")
    a("s_waitcnt vmcnt(0)")
    a("L_end:")
    return HEAD.format(n=NAME, nt=nt, lds=nw * 16384, grid=grid) + "\n".join(L) + TAIL.format(n=NAME, vg=128, ao=128)

def S(kind, bytes_, mod, div, base, per=1, flags=""):
    return dict(kind=kind, bytes=bytes_, mod=mod, div=div, base=base, per=per, flags=flags)

K = 1024; M = 1 << 20
CASES = {
 "l2hit 1M/xcd dma 256thr": (lambda: gen([S('r', 1*M, 8, 1, 0)], nt=256)),
 "l2hit 1M/xcd dma 512thr": (lambda: gen([S('r', 1*M, 8, 1, 0)], nt=512)),
 "l2hit 1M/xcd dma 256thr d7": (lambda: gen([S('r', 1*M, 8, 1, 0)], nt=256, depth=7)),
 "l2hit 1M/xcd dma 256thr d3": (lambda: gen([S('r', 1*M, 8, 1, 0)], nt=256, depth=3)),
 "l2hit 1M/xcd dma nt 256thr": (lambda: gen([S('r', 1*M, 8, 1, 0, flags='nt')], nt=256)),
 "l2hit 1M/xcd dma sc1 256thr": (lambda: gen([S('r', 1*M, 8, 1, 0, flags='sc1')], nt=256)),
 "l2hit 1M/xcd vgpr 256thr": (lambda: gen([S('v', 1*M, 8, 1, 0)], nt=256)),
 "l2hit 1M/xcd vgpr 512thr": (lambda: gen([S('v', 1*M, 8, 1, 0)], nt=512)),
 "l2 4 groups/xcd 1M each (32MB) dma": (lambda: gen([S('r', 1*M, 32, 1, 0)], nt=256)),
 "l2 4 groups/xcd 1M each (32MB) dma nt": (lambda: gen([S('r', 1*M, 32, 1, 0, flags='nt')], nt=256)),
 "oproj-like: 1M shared by 8 + 512K shared by 4": (lambda: gen([S('r', 1*M, 32, 1, 0, per=2), S('r', 512*K, 64, 1, 64*M)], nt=256)),
 "priv 512K nt": (lambda: gen([S('r', 512*K, 256, 1, 0, flags='nt')], nt=256)),
 "priv 512K nt d7": (lambda: gen([S('r', 512*K, 256, 1, 0, flags='nt')], nt=256, depth=7)),
 "priv 512K nt d5": (lambda: gen([S('r', 512*K, 256, 1, 0, flags='nt')], nt=256, depth=5)),
 "priv 512K nt d3": (lambda: gen([S('r', 512*K, 256, 1, 0, flags='nt')], nt=256, depth=3)),
 "priv 512K sc1 nt d7": (lambda: gen([S('r', 512*K, 256, 1, 0, flags='sc1 nt')], nt=256, depth=7)),
 "priv 512K sc0 sc1 nt d7": (lambda: gen([S('r', 512*K, 256, 1, 0, flags='sc0 sc1 nt')], nt=256, depth=7)),
 "priv 512K sc1 d7": (lambda: gen([S('r', 512*K, 256, 1, 0, flags='sc1')], nt=256, depth=7)),
 "priv 512K sc0 sc1 d7": (lambda: gen([S('r', 512*K, 256, 1, 0, flags='sc0 sc1')], nt=256, depth=7)),
 "priv 512K nt 4xcd": (lambda: gen([S('r', 512*K, 256, 1, 0, flags='nt')], nt=256, active_mask=0x0f)),
 "priv 512K nt 4xcd b": (lambda: gen([S('r', 512*K, 256, 1, 0, flags='nt')], nt=256, active_mask=0x55)),
 "priv 512K nt 2xcd": (lambda: gen([S('r', 512*K, 256, 1, 0, flags='nt')], nt=256, active_mask=0x11)),
 "priv 512K nt 1xcd": (lambda: gen([S('r', 512*K, 256, 1, 0, flags='nt')], nt=256, active_mask=0x01)),
 "priv 512K nt + w 64K": (lambda: gen([S('r', 512*K, 256, 1, 0, per=8, flags='nt'), S('w', 64*K, 256, 1, 160*M)], nt=256, depth=8)),
 "priv 512K nt + w 64K nt": (lambda: gen([S('r', 512*K, 256, 1, 0, per=8, flags='nt'), S('w', 64*K, 256, 1, 160*M, flags='nt')], nt=256, depth=8)),
 "priv 512K nt + w 64K sc1": (lambda: gen([S('r', 512*K, 256, 1, 0, per=8, flags='nt'), S('w', 64*K, 256, 1, 160*M, flags='sc1')], nt=256, depth=8)),
 "priv 512K nt + w 128K": (lambda: gen([S('r', 512*K, 256, 1, 0, per=4, flags='nt'), S('w', 128*K, 256, 1, 160*M)], nt=256, depth=8)),
 "priv 512K nt + w 128K nt": (lambda: gen([S('r', 512*K, 256, 1, 0, per=4, flags='nt'), S('w', 128*K, 256, 1, 160*M, flags='nt')], nt=256, depth=8)),
 "w 128K": (lambda: gen([S('w', 128*K, 256, 1, 160*M)], nt=256, depth=8)),
 "w 128K nt": (lambda: gen([S('w', 128*K, 256, 1, 160*M, flags='nt')], nt=256, depth=8)),
 "w 128K sc1": (lambda: gen([S('w', 128*K, 256, 1, 160*M, flags='sc1')], nt=256, depth=8)),
 "priv512K nt + xcd-shared 768K": (lambda: gen([S('r', 512*K, 256, 1, 0, per=2, flags='nt'), S('r', 768*K, 8, 1, 160*M, per=3)], nt=256)),
 "priv512K nt + 768K shared by 8 (24MB)": (lambda: gen([S('r', 512*K, 256, 1, 0, per=2, flags='nt'), S('r', 768*K, 32, 1, 160*M, per=3)], nt=256)),
 "priv512K nt + 768K nt shared by 8 (24MB)": (lambda: gen([S('r', 512*K, 256, 1, 0, per=2, flags='nt'), S('r', 768*K, 32, 1, 160*M, per=3, flags='nt')], nt=256)),
}

if __name__ == "__main__":
    if len(sys.argv) > 1 and sys.argv[1] == "check":
        import subprocess
        for name, f in CASES.items():
            open("mb.s", "w").write(f())
            r = subprocess.run(["clang", "-x", "assembler", "-target", "amdgcn-amd-amdhsa", "-mcpu=gfx950", "-c", "mb.s", "-o", "mb.o"], capture_output=True, text=True)
            assert r.returncode == 0, (name, r.stderr)
        print("ok"); sys.exit(0)
    import numpy as np, hx
    c = hx.Ctx()
    def stamps():
        d = hx.d2h(c.dbg.ptr, np.uint64, (256, 2))
        d = d[d[:, 0] != 0]
        return (d[:, 1].max() - d[:, 0].min()) * 0.01
    for name, f in CASES.items():
        open("mb.s", "w").write(f())
        k = hx.build("mb.s")
        out = []
        for cold in (True, False):
            ts, res = c.time(k, n=7, cold=cold, after=stamps)
            out.append(f"{'cold' if cold else 'warm'}: in-k {np.median(res):6.2f} (min {min(res):6.2f}) ev {np.median(ts):6.2f}")
        print(f"{name:48s} " + " | ".join(out), flush=True)
        k[0].unload()
```

```python
import sys
sys.path.insert(0, "tools")
from mb_stream import HEAD, TAIL, NAME
K = 1024; M = 1 << 20

def gen(iters, nw=4, kind='32', data='rand', duty=0, mask=None):
    L = []; a = L.append
    if mask is not None:
        a(f"s_and_b32 s3, s2, {mask}"); a("s_cbranch_scc1 L_end")
    a("s_load_dwordx2 s[6:7], s[0:1], 88")
    a("s_load_dwordx2 s[4:5], s[0:1], 8")
    a("s_waitcnt lgkmcnt(0)")
    a("s_mov_b32 s12, s6"); a("s_mov_b32 s13, s7"); a("s_mov_b32 s14, 65536"); a("s_mov_b32 s15, 0x00020000")
    a("s_mov_b32 s8, s4"); a("s_mov_b32 s9, s5"); a("s_mov_b32 s10, 0x2000000"); a("s_mov_b32 s11, 0x00020000")
    a("v_lshlrev_b32 v2, 4, v0")
    for i in range(8):
        if data == 'rand':
            a(f"buffer_load_dwordx4 v[{8+4*i}:{11+4*i}], v2, s[8:11], 0 offen offset:{i*16}")
        else:
            for r in range(4): a(f"v_mov_b32 v{8+4*i+r}, 0")
    for r in range(64, 128): a(f"v_mov_b32 v{r}, 0")
    a("s_waitcnt vmcnt(0)")
    a("s_barrier")
    a("s_memrealtime s[40:41]"); a("s_memtime s[44:45]")
    a("s_waitcnt lgkmcnt(0)")
    a(f"s_mov_b32 s18, {iters}")
    a("L_loop:")
    if kind == '32':
        for u in range(16):
            acc = 64 + 16 * (u % 4)
            a(f"v_mfma_f32_32x32x16_bf16 v[{acc}:{acc+15}], v[{8+4*(u%4)}:{11+4*(u%4)}], v[{24+4*(u//4)}:{27+4*(u//4)}], v[{acc}:{acc+15}]")
    elif kind == '16':
        for u in range(32):
            acc = 64 + 4 * (u % 16)
            a(f"v_mfma_f32_16x16x32_bf16 v[{acc}:{acc+3}], v[{8+4*(u%4)}:{11+4*(u%4)}], v[{24+4*((u//4)%4)}:{27+4*((u//4)%4)}], v[{acc}:{acc+3}]")
    else:
        for u in range(128): a("v_add3_u32 v1, v2, v2, v2")
    for d in range(duty): a("s_nop 15")
    a("s_sub_u32 s18, s18, 1"); a("s_cmp_lg_u32 s18, 0"); a("s_cbranch_scc1 L_loop")
    a("s_barrier")
    a("s_memrealtime s[42:43]"); a("s_memtime s[46:47]")
    a("s_waitcnt lgkmcnt(0)")
    a("v_mov_b32 v4, s40"); a("v_mov_b32 v5, s42"); a("v_mov_b32 v6, s44"); a("v_mov_b32 v7, s46")
    a("s_lshl_b32 s3, s2, 4")
    a("v_mov_b32 v3, s3")
    a("v_cmp_eq_u32 vcc, 0, v0")
    a("s_and_saveexec_b64 s[30:31], vcc")
    a("s_cbranch_execz L_end")
    a("buffer_store_dwordx4 v[4:7], v3, s[12:15], 0 offen")
    a("s_waitcnt vmcnt(0)")
    a("L_end:")
    return HEAD.format(n=NAME, nt=nw*64, lds=65536*2, grid=256) + "\n".join(L) + TAIL.format(n=NAME, vg=128, ao=128)

CASES = {}
for kind in ('32', '16'):
    for name, mask in (("all", None), ("half CUs per xcd", 8), ("quarter CUs per xcd", 24), ("half xcds a", 1), ("half xcds b", 4), ("one xcd", 7), ("1/8 CUs per xcd", 56)):
        CASES[f"{kind} {name}"] = (lambda kind=kind, mask=mask: gen(32, 4, kind, 'rand', 0, mask))
if __name__ == "__main__":
    if len(sys.argv) > 1 and sys.argv[1] == "check":
        import subprocess
        for name, f in CASES.items():
            open("mb.s", "w").write(f())
            r = subprocess.run(["clang", "-x", "assembler", "-target", "amdgcn-amd-amdhsa", "-mcpu=gfx950", "-c", "mb.s", "-o", "mb.o"], capture_output=True, text=True)
            assert r.returncode == 0, (name, r.stderr)
        print("ok"); sys.exit(0)
    import numpy as np, hx
    c = hx.Ctx()
    rng = np.random.default_rng(0)
    f = (rng.standard_normal(1 << 20).astype(np.float32) * 0.8).view(np.uint32) >> 16
    hx.h2d(c.inp[1].ptr, f.astype(np.uint16))
    def stamps():
        d = hx.d2h(c.dbg.ptr, np.uint32, (256, 4)).astype(np.int64); d = d[d[:,0] != 0]
        rt = np.median(d[:, 1] - d[:, 0]) * 0.01; cy = np.median((d[:, 3] - d[:, 2]) & 0xffffffff)
        return (rt, cy, cy / rt / 1000)
    for name, f in CASES.items():
        open("mb.s", "w").write(f())
        k = hx.build("mb.s")
        res = []
        for it in range(7):
            c.cold(it)
            c.launch(k); hx.sync()
            res.append(stamps())
        res = np.median(np.array(res), axis=0)
        print(f"{name:28s} us {res[0]:7.2f} cycles {res[1]:9.0f} GHz {res[2]:.3f}", flush=True)
        k[0].unload()
```

```python
NAME = "concat_heads__mha_block_cached__gqa_block_cached__near_ridge"

def vr(b, n=1):
    return f"v{b}" if n == 1 else f"v[{b}:{b+n-1}]"
def sr(b, n=1):
    return f"s{b}" if n == 1 else f"s[{b}:{b+n-1}]"

class Asm:
    def __init__(self):
        self.L = []
        self.ds = []
        self.uid = 0
    def __call__(self, s):
        self.L.append("    " + s)
    def label(self, s):
        self.L.append(s + ":")
    def comment(self, s):
        self.L.append("    ; " + s)
    def newlabel(self, p):
        self.uid += 1
        return f"L_{p}_{self.uid}"
    def dsop(self, s, tag):
        self(s)
        self.ds.append(tag)
    def dswait(self, *tags):
        last = -1
        for i, t in enumerate(self.ds):
            if t in tags:
                last = i
        if last < 0:
            return
        n = len(self.ds) - 1 - last
        assert n <= 15, f"lgkmcnt overflow {n}"
        self(f"s_waitcnt lgkmcnt({n})")
        self.ds = self.ds[last + 1:]
    def dswait_all(self):
        if self.ds:
            self("s_waitcnt lgkmcnt(0)")
        self.ds = []
    def text(self):
        return "\n".join(self.L) + "\n"

def interleave(a, main, fillers, pattern=None):
    n = len(main)
    if pattern is None:
        pattern = [(len(fillers) * (i + 1)) // n - (len(fillers) * i) // n for i in range(n)]
    k = 0
    for i, m in enumerate(main):
        m()
        for _ in range(pattern[i]):
            if k < len(fillers):
                fillers[k](); k += 1
    while k < len(fillers):
        fillers[k](); k += 1

def header(launch_lines):
    ref = open(f"cdna_kernels/{NAME}.s.ref").read().splitlines()
    out = []
    for l in ref:
        if l.startswith("; @launch"):
            out += launch_lines
        elif l.startswith(";"):
            out.append(l)
        else:
            break
    out.append('.amdgcn_target "amdgcn-amd-amdhsa--gfx950"')
    out.append(".text")
    return "\n".join(out) + "\n"

def kernel_begin(name):
    return f".globl {name}\n.p2align 8\n.type {name},@function\n{name}:\n"

def descriptor(name, vgpr, sgpr=102, accum=None):
    if accum is None:
        accum = min(256, (vgpr + 3) // 4 * 4)
    return f""".amdhsa_kernel {name}
  .amdhsa_next_free_vgpr {vgpr}
  .amdhsa_next_free_sgpr {sgpr}
  .amdhsa_accum_offset {accum}
  .amdhsa_group_segment_fixed_size 0
  .amdhsa_kernarg_size 104
  .amdhsa_user_sgpr_count 2
  .amdhsa_user_sgpr_kernarg_segment_ptr 1
  .amdhsa_system_sgpr_workgroup_id_x 1
  .amdhsa_float_denorm_mode_32 3
.end_amdhsa_kernel
"""
```

```python
import sys, math, struct
sys.path.insert(0, "gen")
from asmlib import *
M = 1 << 20

def f32(x):
    return "0x%08x" % struct.unpack("<I", struct.pack("<f", x))[0]

S_X, S_K, S_V, S_WQ, S_WO, S_OUT, S_WS, S_DBG = 8, 12, 16, 20, 24, 28, 32, 36
sXCD, sJ, sBR, sG, sB, sJJ, sWAVE, sH0, sROT, sRH, sHH = range(40, 51)
sCNT, sSET, sDELTA, sD1, sD2, sPH, sTRIG, sTH, sGRP1, sGRP2 = range(51, 61)
sT0, sT1, sT2, sT3, sT4, sT5 = range(61, 67)
sLDS, sXB, sWB, sKV, sOB, sCT, sSPIN, sOST = range(67, 75)
sEX = 76
sSTAMP = 80

SET0 = 16384
RING = 65536
EXCH = 16 * M

class Cfg:
    def __init__(self, **kw):
        self.prof = False
        self.fx = 'nt'; self.fw = 'nt'; self.fkv = 'nt'; self.fo = 'sc1'; self.fwo = 'nt'
        self.D = 3
        self.T = 8.0
        self.rot = 4
        self.prio = 0
        self.__dict__.update(kw)

def gen(cfg):
    a = Asm()
    nst = [0]
    def stamp():
        if cfg.prof:
            r = sSTAMP + 2 * nst[0]; nst[0] += 1
            assert r + 1 <= 101
            a(f"s_memrealtime s[{r}:{r+1}]")
            a("s_waitcnt lgkmcnt(0)")
            a.ds = []

    a("s_cmp_ge_u32 s2, 256"); a("s_cbranch_scc1 L_end")
    a(f"s_and_b32 s{sXCD}, s2, 7")
    a(f"s_lshr_b32 s{sBR}, s{sXCD}, 2")
    a(f"s_mul_i32 s3, s{sBR}, 40")
    a("s_add_u32 s4, s0, s3"); a("s_addc_u32 s5, s1, 0")
    a(f"s_load_dwordx2 s[{S_X}:{S_X+1}], s[4:5], 0")
    a(f"s_load_dwordx2 s[{S_WQ}:{S_WQ+1}], s[4:5], 24")
    a(f"s_load_dwordx2 s[{S_K}:{S_K+1}], s[4:5], 8")
    a(f"s_load_dwordx2 s[{S_V}:{S_V+1}], s[4:5], 16")
    a(f"s_load_dwordx2 s[{S_WO}:{S_WO+1}], s[4:5], 32")
    a(f"s_load_dwordx2 s[{S_OUT}:{S_OUT+1}], s[0:1], 80")
    a(f"s_load_dwordx2 s[{S_DBG}:{S_DBG+1}], s[0:1], 88")
    a(f"s_load_dwordx2 s[{S_WS}:{S_WS+1}], s[0:1], 96")
    a("v_lshrrev_b32 v1, 6, v0"); a("v_and_b32 v0, 63, v0"); a(f"v_readfirstlane_b32 s{sWAVE}, v1")
    a(f"s_lshr_b32 s{sJ}, s2, 3")
    a(f"s_and_b32 s{sG}, s{sXCD}, 3")
    a(f"s_lshr_b32 s{sB}, s{sJ}, 2")
    a(f"s_and_b32 s{sJJ}, s{sJ}, 3")
    for srd, n in ((S_X, 2*M), (S_K, 32*M), (S_V, 32*M), (S_WQ, 8*M), (S_WO, 8*M), (S_OUT, 4*M), (S_WS, 64*M), (S_DBG, 256)):
        a(f"s_mov_b32 s{srd+2}, {n}"); a(f"s_mov_b32 s{srd+3}, 0x00020000")
    a(f"s_lshl_b32 s{sH0}, s{sG}, 3"); a(f"s_lshl_b32 s3, s{sJJ}, 1"); a(f"s_add_u32 s{sH0}, s{sH0}, s3")
    a(f"s_add_u32 s{sROT}, s{sJJ}, s{sB}")
    a(f"s_and_b32 s{sCT}, s{sROT}, 3")
    a(f"s_lshl_b32 s3, s{sXCD}, 3"); a(f"s_add_u32 s3, s3, s{sB}"); a(f"s_lshl_b32 s{sGRP1}, s3, 2")
    a(f"s_lshl_b32 s3, s{sBR}, 3"); a(f"s_add_u32 s{sT0}, s3, s{sB}")
    a(f"s_lshl_b32 s3, s{sT0}, 2"); a(f"s_add_u32 s3, s3, s{sCT}"); a(f"s_lshl_b32 s{sGRP2}, s3, 2")
    a(f"s_lshl_b32 s{sOB}, s{sT0}, 20")
    a(f"s_cmp_ge_u32 s{sWAVE}, 4"); a("s_cbranch_scc1 L_loader")

    if cfg.prio: a(f"s_setprio {cfg.prio}")
    stamp()
    a(f"s_and_b32 s{sRH}, s{sWAVE}, 1"); a(f"s_lshr_b32 s{sHH}, s{sWAVE}, 1")
    vTRB, vNAT, vLIN = 1, 2, 3
    AB, AA, FB, FA, ACC = 4, 6, 16, 48, 128
    vt0, vt1 = 14, 15
    a("v_lshrrev_b32 v16, 4, v0")
    a("v_and_b32 v17, 15, v0")
    a("v_bfe_u32 v18, v0, 2, 2")
    a("v_lshlrev_b32 v19, 3, v16"); a("v_add_u32 v19, v19, v18"); a("v_lshlrev_b32 v19, 8, v19")
    a("v_lshl_add_u32 v19, v18, 6, v19")
    a("v_and_b32 v20, 1, v16"); a("v_lshl_add_u32 v19, v20, 5, v19")
    a("v_and_b32 v21, 3, v0"); a(f"v_lshl_add_u32 v{vTRB}, v21, 3, v19")
    a("v_lshrrev_b32 v21, 1, v16"); a("v_lshl_add_u32 v21, v20, 1, v21")
    a("v_lshl_add_u32 v21, v21, 4, v17"); a(f"v_lshlrev_b32 v{vNAT}, 4, v21")
    a(f"v_lshlrev_b32 v{vLIN}, 4, v0")
    a("v_lshrrev_b32 v19, 1, v17"); a("v_xor_b32 v19, v19, v16"); a("v_lshlrev_b32 v19, 4, v19")
    a("v_lshl_add_u32 v19, v17, 7, v19")
    a(f"s_lshl_b32 s3, s{sRH}, 13"); a(f"s_add_u32 s3, s3, {SET0}"); a(f"v_add_u32 v{AB}, s3, v19")
    a(f"v_xor_b32 v{AB+1}, 64, v{AB}")
    a(f"s_lshl_b32 s3, s{sHH}, 14"); a(f"s_add_u32 s3, s3, {SET0+16384}"); a(f"v_add_u32 v{AA}, s3, v{vTRB}")
    for mb in range(1, 8): a(f"v_xor_b32 v{AA+mb}, {mb*32}, v{AA}")
    a(f"s_mov_b32 s{sPH}, 0"); a(f"s_mov_b32 s{sTRIG}, -1")
    a(f"s_mov_b32 s{sSET}, 0"); a(f"s_mov_b32 s{sD1}, 49152"); a(f"s_mov_b32 s{sD2}, -98304")
    a(f"s_mov_b32 s{sTH}, {f32(cfg.T)}")
    a("s_waitcnt lgkmcnt(0)")

    a.label("L_gemm")
    for r in range(128): a(f"v_mov_b32 v{ACC+r}, 0")
    a(f"s_mov_b32 s{sCNT}, 0")
    addr_regs = list(range(AB, AB+2)) + list(range(AA, AA+8))
    def g_reads(ks, st):
        def rb(nb): return lambda: a.dsop(f"ds_read_b128 {vr(FB+16*st+4*nb,4)}, v{AB+ks} offset:{nb*2048}", ('B', st, nb))
        def ra(mb, t): return lambda: a.dsop(f"ds_read_b64_tr_b16 {vr(FA+32*st+4*mb+2*t,2)}, v{AA+mb} offset:{(32*ks+4*t)*256}", ('A', st, mb))
        R = [rb(0), ra(0,0), ra(0,1), rb(1), rb(2), rb(3)]
        for mb in range(1, 8): R += [ra(mb,0), ra(mb,1)]
        return R
    def g_mfmas(st):
        R = []
        for mb in range(8):
            for nb in range(4):
                def f(mb=mb, nb=nb):
                    a.dswait(('A', st, mb), ('B', st, nb))
                    c = ACC + (mb*4+nb)*4
                    a(f"v_mfma_f32_16x16x32_bf16 {vr(c,4)}, {vr(FA+32*st+4*mb,4)}, {vr(FB+16*st+4*nb,4)}, {vr(c,4)}")
                R.append(f)
        return R
    a("s_barrier")
    if cfg.prof:
        lab = a.newlabel("st"); a(f"s_cmp_lg_u32 s{sPH}, 0"); a(f"s_cbranch_scc1 {lab}"); stamp(); a.label(lab)
    rd = g_reads(0, 0)
    for f in rd[:14]: f()
    a.dswait(('A', 0, 4))
    for f in rd[14:]: f()
    entry_ds = list(a.ds)
    a(".p2align 3")
    a.label("L_gloop")
    mm = g_mfmas(0)
    fill = [lambda: a(f"s_add_u32 s{sSET}, s{sSET}, 1"), lambda: a(f"s_cmp_eq_u32 s{sSET}, 3"),
            lambda: a(f"s_cselect_b32 s{sDELTA}, s{sD2}, s{sD1}"), lambda: a(f"s_cselect_b32 s{sSET}, 0, s{sSET}"),
            lambda: a(f"s_add_u32 s{sCNT}, s{sCNT}, 1"), lambda: a.dswait_all()] + g_reads(1, 1)
    interleave(a, mm, fill, [1]*26 + [0]*6)
    mm = g_mfmas(1)
    fill = [(lambda r=r: a(f"v_add_u32 v{r}, s{sDELTA}, v{r}")) for r in addr_regs]
    a.dswait(('A', 1, 4))
    interleave(a, mm[:5], fill, [2]*5)
    a.dswait_all()
    mm[5]()
    a(f"s_cmp_eq_u32 s{sCNT}, s{sTRIG}"); a("s_cbranch_scc1 L_gtrig")
    a("s_barrier")
    a.label("L_gtrig_ret")
    rd = g_reads(0, 0)
    fill = rd[:14] + rd[14:] + [lambda: a.dswait(('A', 0, 4)), lambda: a(f"s_cmp_lg_u32 s{sCNT}, 16")]
    interleave(a, mm[6:], fill, [1]*20 + [0]*4 + [1, 1])
    assert a.ds == entry_ds, (a.ds, entry_ds)
    a("s_cbranch_scc1 L_gloop")
    a.dswait_all()
    a(f"s_cmp_lg_u32 s{sPH}, 0"); a("s_cbranch_scc1 L_oepi")

    stamp()
    a(f"s_mov_b32 s3, {f32(math.log2(math.e) / math.sqrt(128.0))}")
    a(f"s_lshl_b32 s{sT0}, s{sHH}, 15"); a(f"s_lshl_b32 s{sT1}, s{sRH}, 14"); a(f"s_add_u32 s{sT0}, s{sT0}, s{sT1}")
    a(f"v_add_u32 v{vt0}, s{sT0}, v{vNAT}")
    a("s_nop 3")
    k = 0
    for p in range(4):
        for nb in range(4):
            t = 16 + 4 * (k % 4); k += 1
            for aa in range(2):
                c = ACC + ((2*p+aa)*4+nb)*4
                for r in range(4): a(f"v_mul_f32 v{c+r}, s3, v{c+r}")
            for aa in range(2):
                c = ACC + ((2*p+aa)*4+nb)*4
                a(f"v_cvt_pk_bf16_f32 v{t+2*aa}, v{c}, v{c+1}"); a(f"v_cvt_pk_bf16_f32 v{t+2*aa+1}, v{c+2}, v{c+3}")
            a("s_nop 1")
            a(f"v_permlane16_swap_b32 v{t}, v{t+2}"); a(f"v_permlane16_swap_b32 v{t+1}, v{t+3}")
            if k > 4 and k % 4 == 1: pass
            a.dsop(f"ds_write_b128 v{vt0}, {vr(t,4)} offset:{nb*4096 + p*1024}", 'qw')
            if k % 4 == 0: a.dswait_all()
    a.dswait_all()
    a("s_barrier")

    KA, VA = 4, 8
    Q, FR, SB, P, NEG = 16, 48, 80, 112, 120
    O = 128
    vL, vMX, vTM = 192, 194, 196
    vQA = 200
    vOT = 204
    a("v_and_b32 v16, 15, v0"); a("v_lshrrev_b32 v17, 4, v0")
    a("v_xor_b32 v17, v17, v16"); a("v_lshlrev_b32 v17, 4, v17")
    a("v_lshrrev_b32 v18, 2, v16"); a("v_and_b32 v19, 3, v16"); a("v_lshl_add_u32 v18, v18, 3, v19")
    a("v_lshl_add_u32 v17, v18, 8, v17")
    a(f"v_add_u32 v{KA}, {RING}, v17")
    for ks in range(1, 4): a(f"v_xor_b32 v{KA+ks}, {ks*64}, v{KA}")
    a(f"v_add_u32 v{VA}, {RING+16384}, v{vTRB}")
    for mb in range(1, 8): a(f"v_xor_b32 v{VA+mb}, {mb*32}, v{VA}")
    a(f"s_lshl_b32 s3, s{sWAVE}, 13"); a(f"v_add_u32 v{vQA}, s3, v{vLIN}")
    a(f"s_mov_b32 s{sCNT}, 0")
    a(f"s_mov_b32 s{sSET}, 0"); a(f"s_mov_b32 s{sD1}, 32768"); a(f"s_mov_b32 s{sD2}, -65536")
    a(f"s_lshl_b32 s3, s{sH0}, 15"); a(f"s_add_u32 s{sOST}, s{sOB}, s3"); a(f"s_lshl_b32 s3, s{sWAVE}, 12"); a(f"s_add_u32 s{sOST}, s{sOST}, s3")

    fi = [0]
    def kread(uh, aa, ks):
        i = fi[0] % 8; fi[0] += 1
        return i, (lambda: a.dsop(f"ds_read_b128 {vr(FR+4*i,4)}, v{KA+ks} offset:{(32*uh+4*aa)*256}", ('F', i)))
    def vread(uh, mb):
        i = fi[0] % 8; fi[0] += 1
        return i, [(lambda t=t: a.dsop(f"ds_read_b64_tr_b16 {vr(FR+4*i+2*t,2)}, v{VA+mb} offset:{(32*uh+4*t)*256}", ('F', i))) for t in range(2)]
    def sreg(buf, aa, nb): return SB + 16*buf + 4*(2*aa+nb)
    def qk_mfma(buf, aa, ks, nb, i, first):
        def f():
            a.dswait(('F', i))
            d = sreg(buf, aa, nb)
            c = ("0" if first else vr(NEG+4*nb, 4)) if ks == 0 else vr(d, 4)
            a(f"v_mfma_f32_16x16x32_bf16 {vr(d,4)}, {vr(FR+4*i,4)}, {vr(Q+16*nb+4*ks,4)}, {c}")
        return f
    def pv_mfma(mb, nb, i):
        def f():
            a.dswait(('F', i))
            d = O + (mb*2+nb)*4
            a(f"v_mfma_f32_16x16x32_bf16 {vr(d,4)}, {vr(FR+4*i,4)}, {vr(P+4*nb,4)}, {vr(d,4)}")
        return f
    def ex_ops(buf):
        R = []
        for nb in range(2):
            for aa in range(2):
                s = sreg(buf, aa, nb)
                for r in range(4): R.append(lambda s=s, r=r: a(f"v_exp_f32 v{s+r}, v{s+r}"))
        C = []
        for nb in range(2):
            for aa in range(2):
                s = sreg(buf, aa, nb)
                for h in range(2): C.append(lambda s=s, nb=nb, aa=aa, h=h: a(f"v_cvt_pk_bf16_f32 v{P+4*nb+2*aa+h}, v{s+2*h}, v{s+2*h+1}"))
        out = R[:8]
        for i in range(4): out += [R[8+2*i], R[9+2*i], C[i]]
        out += C[4:]
        return out
    def add_ops(buf):
        R = []
        for aa in range(2):
            for r in range(4):
                for nb in range(2):
                    s = sreg(buf, aa, nb)
                    R.append(lambda s=s, r=r, nb=nb: a(f"v_add_f32 v{vL+nb}, v{vL+nb}, v{s+r}"))
        return R
    def max_ops(buf):
        s = SB + 16*buf
        R = [lambda: a(f"v_max3_f32 v{vMX}, v{s}, v{s+1}, v{s+2}"), lambda: a(f"v_max3_f32 v{vMX+1}, v{s+3}, v{s+4}, v{s+5}")]
        for i in range(5):
            R.append(lambda i=i: a(f"v_max3_f32 v{vMX+i%2}, v{vMX+i%2}, v{s+6+2*i}, v{s+7+2*i}"))
        R.append(lambda: a(f"v_max_f32 v{vMX}, v{vMX}, v{vMX+1}"))
        R.append(lambda: a(f"v_cmp_lt_f32 vcc, s{sTH}, v{vMX}"))
        return R
    def xlane(op, r, t):
        for sw in ("v_permlane16_swap_b32", "v_permlane32_swap_b32"):
            a(f"v_mov_b32 v{t}, v{r}"); a("s_nop 1"); a(f"{sw} v{r}, v{t}"); a("s_nop 1"); a(f"{op} v{r}, v{r}, v{t}")
    def qmax(buf):
        for nb in range(2):
            s0, s1 = sreg(buf, 0, nb), sreg(buf, 1, nb)
            a(f"v_max3_f32 v{vMX+nb}, v{s0}, v{s0+1}, v{s0+2}")
            a(f"v_max3_f32 v{vMX+nb}, v{vMX+nb}, v{s0+3}, v{s1}")
            a(f"v_max3_f32 v{vMX+nb}, v{vMX+nb}, v{s1+1}, v{s1+2}")
            a(f"v_max_f32 v{vMX+nb}, v{vMX+nb}, v{s1+3}")
        for nb in range(2): xlane("v_max_f32", vMX+nb, vTM)
    slow_paths = []
    def check(buf):
        lab = a.newlabel("slow"); a(f"s_cbranch_vccnz {lab}"); a.label(lab + "_ret"); slow_paths.append((lab, buf))
    LA = 4
    def slot(mf, nxt_reads, own_reads, valu, pre_next=None):
        seq = own_reads + nxt_reads
        nv = len(valu); k = 0
        for pair in range(8):
            mf[2*pair]()
            if pair == 8 - LA and pre_next: pre_next()
            rds = seq[pair] if pair < len(seq) else []
            if rds: rds[0]()
            n1 = (nv * (2*pair+1)) // 16 - k
            for _ in range(n1): valu[k](); k += 1
            mf[2*pair+1]()
            for r in rds[1:]: r()
            n1 = (nv * (2*pair+2)) // 16 - k
            for _ in range(n1): valu[k](); k += 1
    def kfrags(uh):
        F = [kread(uh, aa, ks) for ks in range(4) for aa in range(2)]
        return [f[0] for f in F], [[f[1]] for f in F]
    def vfrags(uh):
        F = [vread(uh, mb) for mb in range(8)]
        return [f[0] for f in F], [f[1] for f in F]
    def qk_list(buf, idx, first=False):
        R = []
        n = 0
        for ks in range(4):
            for aa in range(2):
                for nb in range(2): R.append(qk_mfma(buf, aa, ks, nb, idx[n], first))
                n += 1
        return R
    def pv_list(idx):
        return [pv_mfma(mb, nb, idx[mb]) for mb in range(8) for nb in range(2)]

    a.label("L_item")
    for nb in range(2):
        for ks in range(4):
            a.dsop(f"ds_read_b128 {vr(Q+16*nb+4*ks,4)}, v{vQA} offset:{nb*4096+ks*1024}", 'q')
    a(f"v_add_u32 v{vQA}, 32768, v{vQA}")
    for r in range(64): a(f"v_mov_b32 v{O+r}, 0")
    a(f"v_mov_b32 v{vL}, 0"); a(f"v_mov_b32 v{vL+1}, 0")
    a.dswait_all()
    a("s_barrier")
    if cfg.prof:
        lab = a.newlabel("st"); a(f"s_cmp_lg_u32 s{sCNT}, 0"); a(f"s_cbranch_scc1 {lab}"); stamp(); a.label(lab)
    fi[0] = 0
    idx0, rd0 = kfrags(0)
    idx1, rd1 = kfrags(1)
    for r in rd0[:LA]: r[0]()
    slot(qk_list(0, idx0, first=True), rd1[:LA], rd0[LA:], [])
    a("s_nop 7")
    qmax(0)
    for nb in range(2):
        for aa in range(2):
            s = sreg(0, aa, nb)
            for r in range(4): a(f"v_sub_f32 v{s+r}, v{s+r}, v{vMX+nb}")
        for r in range(4): a(f"v_sub_f32 v{NEG+4*nb+r}, 0, v{vMX+nb}")
    a("s_nop 1")

    def body(last):
        global_idx1, global_rd1 = idx1, rd1
        fi[0] = 16
        iv0, rv0 = vfrags(0)
        def bar_a():
            if not last:
                a(f"s_cmp_eq_u32 s{sCNT}, 9"); a("s_cbranch_scc1 L_atrig")
            a("s_barrier")
            if not last: a.label("L_atrig_ret")
        slot(qk_list(1, global_idx1), rv0[:LA], global_rd1[LA:], ex_ops(0), bar_a)
        a("s_nop 0")
        scal = [lambda: a(f"s_add_u32 s{sSET}, s{sSET}, 1"), lambda: a(f"s_cmp_eq_u32 s{sSET}, 3"),
                lambda: a(f"s_cselect_b32 s{sDELTA}, s{sD2}, s{sD1}"), lambda: a(f"s_cselect_b32 s{sSET}, 0, s{sSET}"),
                lambda: a(f"s_add_u32 s{sCNT}, s{sCNT}, 1")]
        kupd = [(lambda r=r: a(f"v_add_u32 v{r}, s{sDELTA}, v{r}")) for r in range(KA, KA+4)]
        vupd = [(lambda r=r: a(f"v_add_u32 v{r}, s{sDELTA}, v{r}")) for r in range(VA, VA+8)]
        if not last:
            ik0, rk0 = kfrags(0)
            slot(pv_list(iv0), rk0[:LA], rv0[LA:], scal + kupd + add_ops(0) + max_ops(1), lambda: a("s_barrier"))
            check(1)
            iv1, rv1 = vfrags(1)
            slot(qk_list(0, ik0), rv1[:LA], rk0[LA:], ex_ops(1))
            a("s_nop 0")
            ik1, rk1 = kfrags(1)
            assert ik1 == global_idx1
            slot(pv_list(iv1), rk1[:LA], rv1[LA:], add_ops(1) + vupd + max_ops(0))
            check(0)
        else:
            fi[0] += 8
            iv1, rv1 = vfrags(1)
            slot(pv_list(iv0), rv1[:LA], rv0[LA:], scal + kupd + add_ops(0) + max_ops(1))
            check(1)
            for f in ex_ops(1): f()
            a("s_nop 1")
            slot(pv_list(iv1), [], rv1[LA:], add_ops(1) + vupd)
    entry_ds = list(a.ds)
    a(".p2align 3")
    a.label("L_aloop")
    body(False)
    assert a.ds == entry_ds, (a.ds, entry_ds)
    a(f"s_and_b32 s3, s{sCNT}, 7"); a("s_cmp_lg_u32 s3, 7"); a("s_cbranch_scc1 L_aloop")
    body(True)
    for nb in range(2): xlane("v_add_f32", vL+nb, vTM)
    a(f"v_rcp_f32 v{vL}, v{vL}"); a(f"v_rcp_f32 v{vL+1}, v{vL+1}")
    a("s_nop 0")
    k = 0
    for p in range(4):
        for nb in range(2):
            t = vOT + 4 * (k % 4); k += 1
            for aa in range(2):
                c = O + ((2*p+aa)*2+nb)*4
                for r in range(4): a(f"v_mul_f32 v{c+r}, v{vL+nb}, v{c+r}")
            for aa in range(2):
                c = O + ((2*p+aa)*2+nb)*4
                a(f"v_cvt_pk_bf16_f32 v{t+2*aa}, v{c}, v{c+1}"); a(f"v_cvt_pk_bf16_f32 v{t+2*aa+1}, v{c+2}, v{c+3}")
            a("s_nop 1")
            a(f"v_permlane16_swap_b32 v{t}, v{t+2}"); a(f"v_permlane16_swap_b32 v{t+1}, v{t+3}")
            if p == 2 and nb == 0: a(f"s_add_u32 s{sOST}, s{sOST}, 16384")
            a(f"buffer_store_dwordx4 {vr(t,4)}, v{vNAT}, s[{S_WS}:{S_WS+3}], s{sOST} offen offset:{nb*2048+(p&1)*1024} {cfg.fo}")
    a(f"s_add_u32 s{sOST}, s{sOST}, 16384")
    a(f"s_cmp_lg_u32 s{sCNT}, 16"); a("s_cbranch_scc1 L_item")
    stamp()

    a(f"s_lshl_b32 s3, s{sRH}, 13"); a(f"s_add_u32 s3, s3, {SET0}"); a(f"v_add_u32 v{AB}, s3, v{vLIN}")
    a(f"v_add_u32 v{AB+1}, 1024, v{AB}")
    for dq in range(4):
        a(f"s_xor_b32 s{sT0}, s{sG}, {dq}")
        a(f"s_lshr_b32 s{sT1}, s{sT0}, 1"); a(f"s_lshl_b32 s{sT1}, s{sT1}, 14"); a(f"s_add_u32 s{sT1}, s{sT1}, {SET0+16384}")
        a(f"s_and_b32 s{sT0}, s{sT0}, 1"); a(f"s_lshl_b32 s{sT0}, s{sT0}, 1"); a(f"s_add_u32 s{sT0}, s{sT0}, s{sHH}"); a(f"s_lshl_b32 s{sT0}, s{sT0}, 6")
        a(f"v_xor_b32 v{AA+2*dq}, s{sT0}, v{vTRB}")
        a(f"v_add_u32 v{AA+2*dq}, s{sT1}, v{AA+2*dq}")
        a(f"v_xor_b32 v{AA+2*dq+1}, 32, v{AA+2*dq}")
    a(f"s_mov_b32 s{sPH}, 1"); a(f"s_mov_b32 s{sTRIG}, 2")
    a(f"s_mov_b32 s{sSET}, 2"); a(f"s_mov_b32 s{sD1}, -49152"); a(f"s_mov_b32 s{sD2}, 98304")
    a("s_branch L_gemm")

    def signal(grp, val):
        lab = a.newlabel("nosig")
        a(f"s_cmp_lg_u32 s{sWAVE}, 0"); a(f"s_cbranch_scc1 {lab}")
        a(f"s_mov_b64 s[{sEX}:{sEX+1}], exec"); a("s_mov_b64 exec, 1")
        a(f"v_mov_b32 v{vt0 if val != 1 else vTM}, {val}")
        a(f"buffer_atomic_add v{vt0 if val != 1 else vTM}, off, s[{S_DBG}:{S_DBG+3}], s{grp} sc1")
        a(f"s_mov_b64 exec, s[{sEX}:{sEX+1}]")
        a("s_nop 3")
        a.label(lab)
    a.label("L_atrig")
    a("s_waitcnt vmcnt(0)"); a("s_barrier")
    signal(sGRP1, 1)
    a("s_branch L_atrig_ret")
    a.label("L_gtrig")
    a("s_waitcnt vmcnt(0)"); a("s_barrier")
    signal(sGRP1, 0x100)
    a("s_branch L_gtrig_ret")
    for lab, buf in slow_paths:
        a.label(lab)
        a("s_nop 7")
        qmax(buf)
        for nb in range(2):
            a(f"v_max_f32 v{vMX+nb}, 0, v{vMX+nb}")
        for nb in range(2):
            a(f"v_sub_f32 v{vTM+nb}, 0, v{vMX+nb}")
            a(f"v_exp_f32 v{vTM+nb}, v{vTM+nb}")
        for nb in range(2):
            for aa in range(2):
                s = sreg(buf, aa, nb)
                for r in range(4): a(f"v_sub_f32 v{s+r}, v{s+r}, v{vMX+nb}")
            for r in range(4): a(f"v_sub_f32 v{NEG+4*nb+r}, v{NEG+4*nb+r}, v{vMX+nb}")
            a(f"v_mul_f32 v{vL+nb}, v{vL+nb}, v{vTM+nb}")
        for mb in range(8):
            for nb in range(2):
                for r in range(4): a(f"v_mul_f32 v{O+(mb*2+nb)*4+r}, v{O+(mb*2+nb)*4+r}, v{vTM+nb}")
        a("s_nop 1")
        a(f"s_branch {lab}_ret")

    a.label("L_oepi")
    stamp()
    def inbox(dst, gx):
        a(f"s_and_b32 s3, s{sXCD}, 4"); a(f"s_add_u32 s3, s3, s{gx}"); a("s_lshl_b32 s3, s3, 3"); a(f"s_add_u32 s3, s3, s{sB}")
        a("s_lshl_b32 s3, s3, 2"); a(f"s_add_u32 s3, s3, s{sCT}"); a("s_mul_i32 s3, s3, 49152")
        a(f"s_lshl_b32 s{dst}, s{sWAVE}, 12"); a(f"s_add_u32 s{dst}, s{dst}, s3"); a(f"s_add_u32 s{dst}, s{dst}, {EXCH}")
    k = 0
    for dq in range(1, 4):
        a(f"s_xor_b32 s{sT1}, s{sG}, {dq}")
        inbox(sT0, sT1)
        if dq > 1: a(f"s_add_u32 s{sT0}, s{sT0}, {(dq-1)*16384}")
        for nb in range(4):
            t = 16 + 4 * k; k += 1
            for aa in range(2):
                c = ACC + ((2*dq+aa)*4+nb)*4
                a(f"v_cvt_pk_bf16_f32 v{t+2*aa}, v{c}, v{c+1}"); a(f"v_cvt_pk_bf16_f32 v{t+2*aa+1}, v{c+2}, v{c+3}")
            a(f"buffer_store_dwordx4 {vr(t,4)}, v{vLIN}, s[{S_WS}:{S_WS+3}], s{sT0} offen offset:{nb*1024} sc1")
    inbox(sT0, sG)
    a("v_and_b32 v4, 15, v0"); a("v_lshlrev_b32 v4, 12, v4")
    a(f"v_lshrrev_b32 v5, 8, v{vNAT}"); a("v_lshl_add_u32 v4, v5, 4, v4")
    a(f"s_lshl_b32 s{sT2}, s{sB}, 19"); a(f"s_lshl_b32 s3, s{sRH}, 18"); a(f"s_add_u32 s{sT2}, s{sT2}, s3")
    a(f"s_lshl_b32 s3, s{sBR}, 11"); a(f"s_add_u32 s{sT2}, s{sT2}, s3")
    a(f"s_lshl_b32 s3, s{sCT}, 9"); a(f"s_add_u32 s{sT2}, s{sT2}, s3")
    a(f"s_lshl_b32 s3, s{sG}, 7"); a(f"s_add_u32 s{sT2}, s{sT2}, s3")
    a(f"s_lshl_b32 s3, s{sHH}, 6"); a(f"s_add_u32 s{sT2}, s{sT2}, s3")
    a("s_waitcnt vmcnt(0)")
    a("s_barrier")
    stamp()
    signal(sGRP2, 0x10000)
    a(f"s_cmp_lg_u32 s{sWAVE}, 0"); a("s_cbranch_scc1 L_x2done")
    a(f"s_mov_b32 s{sSPIN}, 0")
    a.label("L_x2poll")
    a(f"buffer_load_dword v5, off, s[{S_DBG}:{S_DBG+3}], s{sGRP2} sc1")
    a(f"s_add_u32 s{sSPIN}, s{sSPIN}, 1")
    a("s_waitcnt vmcnt(0)")
    a("v_readfirstlane_b32 s3, v5")
    a("s_lshr_b32 s3, s3, 16"); a("s_cmp_ge_u32 s3, 4"); a("s_cbranch_scc1 L_x2done")
    a(f"s_cmp_lt_u32 s{sSPIN}, 0x40000"); a("s_cbranch_scc1 L_x2poll")
    a.label("L_x2done")
    a("s_barrier")
    stamp()
    for dq in range(3):
        for nb in range(4):
            t = 16 + 4 * (dq*4+nb)
            a(f"buffer_load_dwordx4 {vr(t,4)}, v{vLIN}, s[{S_WS}:{S_WS+3}], s{sT0} offen offset:{nb*1024} sc1")
        if dq < 2: a(f"s_add_u32 s{sT0}, s{sT0}, 16384")
    a("s_mov_b32 s3, 0xffff0000")
    for dq in range(3):
        for nb in range(4):
            t = 16 + 4 * (dq*4+nb)
            a(f"s_waitcnt vmcnt({11 - (dq*4+nb) + (nb if dq == 2 else 0)})")
            for aa in range(2):
                c = ACC + (aa*4+nb)*4
                for h in range(2):
                    a(f"v_lshlrev_b32 v6, 16, v{t+2*aa+h}"); a(f"v_and_b32 v7, s3, v{t+2*aa+h}")
                    a(f"v_add_f32 v{c+2*h}, v{c+2*h}, v6"); a(f"v_add_f32 v{c+2*h+1}, v{c+2*h+1}, v7")
            if dq == 2:
                for aa in range(2):
                    c = ACC + (aa*4+nb)*4
                    a(f"v_cvt_pk_bf16_f32 v{t+2*aa}, v{c}, v{c+1}"); a(f"v_cvt_pk_bf16_f32 v{t+2*aa+1}, v{c+2}, v{c+3}")
                a("s_nop 1")
                a(f"v_permlane16_swap_b32 v{t}, v{t+2}"); a(f"v_permlane16_swap_b32 v{t+1}, v{t+3}")
                a(f"buffer_store_dwordx4 {vr(t,4)}, v4, s[{S_OUT}:{S_OUT+3}], s{sT2} offen")
                a(f"s_add_u32 s{sT2}, s{sT2}, 65536")
    if cfg.prof:
        a("s_waitcnt vmcnt(0)")
        stamp()
        a(f"s_cmp_lg_u32 s{sWAVE}, 0"); a("s_cbranch_scc1 L_end")
        a("s_lshl_b32 s3, s2, 6"); a(f"s_add_u32 s3, s3, {48*M}")
        a("s_mov_b64 exec, 1")
        for i in range(nst[0]):
            a(f"v_mov_b32 v4, s{sSTAMP+2*i}")
            a(f"buffer_store_dword v4, off, s[{S_WS}:{S_WS+3}], s3 offset:{4*i}")
            a("s_nop 1")
    a("s_endpgm")

    a.label("L_loader")
    a(f"s_sub_u32 s{sWAVE}, s{sWAVE}, 4")
    VX, VW, VK, VV, VWO, VL, VP = 4, 8, 12, 16, 20, 24, 25
    a("v_lshrrev_b32 v1, 3, v0"); a("v_and_b32 v2, 7, v0"); a("v_lshrrev_b32 v3, 4, v0")
    a(f"s_lshl_b32 s3, s{sWAVE}, 16")
    for q in range(4):
        a(f"v_add_u32 v30, {4*q}, v3"); a("v_and_b32 v30, 7, v30"); a("v_xor_b32 v30, v30, v2"); a("v_lshlrev_b32 v30, 4, v30")
        a(f"v_add_u32 v31, {8*q}, v1"); a("v_lshlrev_b32 v31, 11, v31"); a("v_add3_u32 v30, v30, v31, s3")
        a(f"v_subrev_u32 v{VX+q}, {q*1024}, v30")
    a("v_and_b32 v1, 15, v0"); a("v_lshlrev_b32 v30, 2, v3"); a("v_xor_b32 v2, v1, v30")
    a(f"s_lshl_b32 s3, s{sWAVE}, 17")
    for q in range(4):
        a(f"v_xor_b32 v30, {((q>>1)&1)<<1}, v2"); a("v_lshlrev_b32 v30, 4, v30")
        a(f"v_add_u32 v31, {4*q}, v3"); a("v_lshlrev_b32 v31, 13, v31"); a("v_add3_u32 v30, v30, v31, s3")
        a(f"v_subrev_u32 v{VW+q}, {q*1024}, v30")
    a(f"s_lshl_b32 s{sXB}, s{sB}, 18")
    a(f"s_lshl_b32 s{sWB}, s{sH0}, 8")
    a(f"s_lshl_b32 s{sT5}, s{sWAVE}, 12")
    a(f"s_add_u32 s{sLDS}, s{sT5}, {SET0}")
    a(f"s_mov_b32 s{sSET}, 0"); a(f"s_mov_b32 s{sCNT}, 0"); a(f"s_mov_b32 s{sD1}, 49152"); a(f"s_mov_b32 s{sD2}, -98304")
    a("s_waitcnt lgkmcnt(0)")
    def tile(ldsoff, vbase, vstep, srd, so, fl):
        a(f"s_add_u32 m0, s{sLDS}, {ldsoff}")
        a("s_nop 0")
        for q in range(4):
            a(f"buffer_load_dwordx4 v{vbase+vstep*q}, s[{srd}:{srd+3}], s{so} offen offset:{q*1024} {fl} lds")
    def adv(n=3):
        a(f"s_add_u32 s{sCNT}, s{sCNT}, 1")
        a(f"s_add_u32 s{sSET}, s{sSET}, 1"); a(f"s_cmp_eq_u32 s{sSET}, {n}")
        a(f"s_cselect_b32 s{sDELTA}, s{sD2}, s{sD1}"); a(f"s_cselect_b32 s{sSET}, 0, s{sSET}"); a(f"s_add_u32 s{sLDS}, s{sLDS}, s{sDELTA}")
    def q_issue():
        rot = cfg.rot
        if rot:
            a(f"s_add_u32 s3, s{sCNT}, s{sROT}"); a(f"s_and_b32 s3, s3, {rot-1}"); a(f"s_and_b32 s{sT0}, s{sCNT}, {15 & ~(rot-1)}"); a(f"s_or_b32 s3, s3, s{sT0}")
        else:
            a(f"s_mov_b32 s3, s{sCNT}")
        a(f"s_lshl_b32 s{sT0}, s3, 7"); a(f"s_add_u32 s{sT0}, s{sT0}, s{sXB}")
        a(f"s_lshl_b32 s{sT1}, s3, 19"); a(f"s_add_u32 s{sT1}, s{sT1}, s{sWB}"); a(f"s_add_u32 s{sT2}, s{sT1}, 256")
        tile(0, VX, 1, S_X, sT0, cfg.fx); tile(16384, VW, 1, S_WQ, sT1, cfg.fw); tile(32768, VW, 1, S_WQ, sT2, cfg.fw)
        adv()
    q_issue()
    a(f"s_lshl_b32 s3, s{sWAVE}, 1")
    for q in range(4):
        a(f"s_add_u32 s{sT3}, s3, {q>>1}"); a(f"s_and_b32 s{sT3}, s{sT3}, 3"); a(f"s_lshl_b32 s{sT3}, s{sT3}, 2")
        a("v_xor_b32 v30, v1, v3"); a(f"v_xor_b32 v30, s{sT3}, v30"); a("v_lshlrev_b32 v30, 4, v30")
        a("v_lshl_add_u32 v30, v3, 8, v30"); a(f"v_add_u32 v{VK+q}, s{sT5}, v30")
        a(f"v_xor_b32 v30, {((q>>1)&1)<<1}, v2"); a("v_lshlrev_b32 v30, 4, v30")
        a("v_lshl_add_u32 v31, v3, 8, v30"); a(f"v_add_u32 v{VV+q}, s{sT5}, v31")
        a(f"v_add_u32 v31, {4*q}, v3"); a("v_lshl_add_u32 v30, v31, 11, v30")
        a(f"s_lshl_b32 s{sT3}, s{sWAVE}, 15"); a(f"v_add_u32 v30, s{sT3}, v30")
        a(f"v_subrev_u32 v{VWO+q}, {q*1024}, v30")
    a("v_lshlrev_b32 v30, 4, v0"); a(f"v_add_u32 v{VL}, s{sT5}, v30")
    a(f"s_lshl_b32 s3, s{sB}, 5"); a(f"s_add_u32 s3, s3, s{sH0}"); a(f"s_lshl_b32 s{sKV}, s3, 17")
    a.label("L_yq")
    q_issue()
    a("s_waitcnt vmcnt(12)")
    a("s_barrier")
    a(f"s_cmp_lt_u32 s{sCNT}, 16"); a("s_cbranch_scc1 L_yq")
    a(f"s_add_u32 s{sLDS}, s{sT5}, {RING}")
    a(f"s_mov_b32 s{sSET}, 0"); a(f"s_mov_b32 s{sCNT}, 0"); a(f"s_mov_b32 s{sD1}, 32768"); a(f"s_mov_b32 s{sD2}, -65536")
    def ktile(): tile(0, VK, 1, S_K, sKV, cfg.fkv)
    def vtile():
        tile(16384, VV, 1, S_V, sKV, cfg.fkv)
        a(f"s_add_u32 s{sKV}, s{sKV}, 16384")
        adv()
    ktile(); vtile(); ktile()
    a("s_waitcnt vmcnt(12)"); a("s_barrier")
    vtile()
    a("s_barrier")
    a("s_barrier")
    a.label("L_ya")
    a("s_waitcnt vmcnt(12)"); a("s_barrier")
    ktile()
    a("s_waitcnt vmcnt(12)"); a("s_barrier")
    vtile()
    a(f"s_cmp_lt_u32 s{sCNT}, 16"); a("s_cbranch_scc1 L_ya")
    def poll_issue():
        a(f"buffer_load_dword v{VP}, off, s[{S_DBG}:{S_DBG+3}], s{sGRP1} sc1")
    def poll_check(shift):
        done = a.newlabel("pd"); spin = a.newlabel("ps")
        a(f"s_mov_b32 s{sSPIN}, 0")
        a.label(spin)
        a(f"v_readfirstlane_b32 s3, v{VP}")
        a(f"s_bfe_u32 s3, s3, {(8 << 16) | shift}"); a("s_cmp_ge_u32 s3, 4"); a(f"s_cbranch_scc1 {done}")
        poll_issue()
        a(f"s_add_u32 s{sSPIN}, s{sSPIN}, 1")
        a("s_waitcnt vmcnt(0)")
        a(f"s_cmp_lt_u32 s{sSPIN}, 0x40000"); a(f"s_cbranch_scc1 {spin}")
        a.label(done)
    a(f"s_add_u32 s{sLDS}, s{sT5}, {SET0}")
    a(f"s_mov_b32 s{sSET}, 2"); a(f"s_mov_b32 s{sCNT}, 0"); a(f"s_mov_b32 s{sD1}, -49152"); a(f"s_mov_b32 s{sD2}, 98304")
    a(f"s_lshl_b32 s{sWB}, s{sCT}, 9")
    def o_addr():
        a(f"s_lshr_b32 s3, s{sCNT}, 1"); a(f"s_add_u32 s3, s3, s{sJJ}"); a("s_and_b32 s3, s3, 3"); a("s_lshl_b32 s3, s3, 1")
        a(f"s_lshr_b32 s{sT0}, s{sCNT}, 3"); a(f"s_add_u32 s3, s3, s{sT0}")
        a(f"s_lshl_b32 s{sT0}, s{sG}, 3"); a(f"s_add_u32 s3, s3, s{sT0}"); a("s_lshl_b32 s3, s3, 1")
        a(f"s_and_b32 s{sT0}, s{sCNT}, 1"); a(f"s_add_u32 s3, s3, s{sT0}")
        a(f"s_lshl_b32 s{sT0}, s3, 14"); a(f"s_add_u32 s{sT0}, s{sT0}, s{sOB}")
        a(f"s_lshl_b32 s{sT1}, s3, 17"); a(f"s_add_u32 s{sT1}, s{sT1}, s{sWB}"); a(f"s_add_u32 s{sT2}, s{sT1}, 256")
    def otile(): tile(0, VL, 0, S_WS, sT0, 'sc1')
    def w0tile(): tile(16384, VWO, 1, S_WO, sT1, cfg.fwo)
    def w1tile(): tile(32768, VWO, 1, S_WO, sT2, cfg.fwo)
    o_addr()
    a("s_waitcnt vmcnt(12)"); a("s_barrier")
    poll_issue()
    a("s_waitcnt vmcnt(9)"); a("s_barrier")
    w0tile()
    a("s_waitcnt vmcnt(9)"); a("s_barrier")
    w1tile()
    a("s_waitcnt vmcnt(8)"); a("s_barrier")
    poll_check(0)
    otile()
    adv()
    a.label("L_yo")
    o_addr()
    lab = a.newlabel("np"); a(f"s_cmp_lg_u32 s{sCNT}, 7"); a(f"s_cbranch_scc1 {lab}"); poll_issue(); a.label(lab)
    otile(); w0tile(); w1tile()
    adv()
    a("s_waitcnt vmcnt(12)")
    lab = a.newlabel("nc"); a(f"s_cmp_lg_u32 s{sCNT}, 8"); a(f"s_cbranch_scc1 {lab}"); poll_check(8); a.label(lab)
    a("s_barrier")
    a(f"s_cmp_lt_u32 s{sCNT}, 16"); a("s_cbranch_scc1 L_yo")
    a("s_waitcnt vmcnt(0)")
    a("s_barrier")
    a("s_barrier")
    a.label("L_end")
    a("s_endpgm")
    k = NAME + "_kernel"
    return header(["; @launch grid=(256,1,1) block=(512,1,1) lds=163840"]) + kernel_begin(k) + a.text() + \
        '.section .rodata,"a"\n.p2align 6\n' + descriptor(k, 256)

if __name__ == "__main__":
    out = sys.argv[1] if len(sys.argv) > 1 else f"cdna_kernels/{NAME}.s"
    kw = {}
    for x in sys.argv[2:]:
        k, v = x.split("=")
        try: v = eval(v)
        except Exception: pass
        kw[k] = v
    open(out, "w").write(gen(Cfg(**kw)))
    print("wrote", out)
```

```python
import sys, math, struct
sys.path.insert(0, "gen")
from asmlib import *
M = 1 << 20

def f32(x):
    return "0x%08x" % struct.unpack("<I", struct.pack("<f", x))[0]

S_X, S_K, S_V, S_WQ, S_WO, S_OUT, S_WS, S_DBG = 8, 12, 16, 20, 24, 28, 32, 36
sXCD, sJ, sBR, sG, sB, sJJ, sWAVE, sH0, sROT, sRH, sHH = range(40, 51)
sCNT, sSET, sDELTA, sD1, sD2, sPH, sTRIG, sTH, sGRP1, sGRP2 = range(51, 61)
sT0, sT1, sT2, sT3, sT4, sT5 = range(61, 67)
sLDS, sXB, sWB, sKV, sOB, sCT, sSPIN, sOST = range(67, 75)
sEX = 76
sSTAMP = 80

SET0 = 16384
RING = 65536
EXCH = 16 * M

class Cfg:
    def __init__(self, **kw):
        self.prof = False
        self.fx = ''; self.fw = ''; self.fkv = 'nt'; self.fo = 'sc1'; self.fwo = ''
        self.D = 3
        self.T = 8.0
        self.rot = 4
        self.prio = 0
        self.padto = 0
        self.__dict__.update(kw)

def gen(cfg):
    a = Asm()
    nst = [0]
    def stamp():
        if cfg.prof:
            r = sSTAMP + 2 * nst[0]; nst[0] += 1
            assert r + 1 <= 101
            a(f"s_memrealtime s[{r}:{r+1}]")
            a("s_waitcnt lgkmcnt(0)")
            a.ds = []

    a("s_cmp_ge_u32 s2, 256"); a("s_cbranch_scc1 L_end")
    a(f"s_and_b32 s{sXCD}, s2, 7")
    a(f"s_lshr_b32 s{sBR}, s{sXCD}, 2")
    a(f"s_mul_i32 s3, s{sBR}, 40")
    a("s_add_u32 s4, s0, s3"); a("s_addc_u32 s5, s1, 0")
    a(f"s_load_dwordx2 s[{S_X}:{S_X+1}], s[4:5], 0")
    a(f"s_load_dwordx2 s[{S_WQ}:{S_WQ+1}], s[4:5], 24")
    a(f"s_load_dwordx2 s[{S_K}:{S_K+1}], s[4:5], 8")
    a(f"s_load_dwordx2 s[{S_V}:{S_V+1}], s[4:5], 16")
    a(f"s_load_dwordx2 s[{S_WO}:{S_WO+1}], s[4:5], 32")
    a(f"s_load_dwordx2 s[{S_OUT}:{S_OUT+1}], s[0:1], 80")
    a(f"s_load_dwordx2 s[{S_DBG}:{S_DBG+1}], s[0:1], 88")
    a(f"s_load_dwordx2 s[{S_WS}:{S_WS+1}], s[0:1], 96")
    a("v_lshrrev_b32 v1, 6, v0"); a("v_and_b32 v0, 63, v0"); a(f"v_readfirstlane_b32 s{sWAVE}, v1")
    a(f"s_lshr_b32 s{sJ}, s2, 3")
    a(f"s_and_b32 s{sG}, s{sXCD}, 3")
    a(f"s_lshr_b32 s{sB}, s{sJ}, 2")
    a(f"s_and_b32 s{sJJ}, s{sJ}, 3")
    for srd, n in ((S_X, 2*M), (S_K, 32*M), (S_V, 32*M), (S_WQ, 8*M), (S_WO, 8*M), (S_OUT, 4*M), (S_WS, 64*M), (S_DBG, 256)):
        a(f"s_mov_b32 s{srd+2}, {n}"); a(f"s_mov_b32 s{srd+3}, 0x00020000")
    a(f"s_lshl_b32 s{sH0}, s{sG}, 3"); a(f"s_lshl_b32 s3, s{sJJ}, 1"); a(f"s_add_u32 s{sH0}, s{sH0}, s3")
    a(f"s_add_u32 s{sROT}, s{sJJ}, s{sB}")
    a(f"s_and_b32 s{sCT}, s{sROT}, 3")
    a(f"s_lshl_b32 s3, s{sXCD}, 3"); a(f"s_add_u32 s3, s3, s{sB}"); a(f"s_lshl_b32 s{sGRP1}, s3, 2")
    a(f"s_lshl_b32 s3, s{sBR}, 3"); a(f"s_add_u32 s{sT0}, s3, s{sB}")
    a(f"s_lshl_b32 s3, s{sT0}, 2"); a(f"s_add_u32 s3, s3, s{sCT}"); a(f"s_lshl_b32 s{sGRP2}, s3, 2")
    a(f"s_lshl_b32 s{sOB}, s{sT0}, 20")
    a(f"s_cmp_ge_u32 s{sWAVE}, 4"); a("s_cbranch_scc1 L_loader")

    if cfg.prio: a(f"s_setprio {cfg.prio}")
    if cfg.padto: a("s_memrealtime s[98:99]")
    stamp()
    a(f"s_and_b32 s{sRH}, s{sWAVE}, 1"); a(f"s_lshr_b32 s{sHH}, s{sWAVE}, 1")
    vTRB, vNAT, vLIN = 1, 2, 3
    AB, AA, FB, FA, ACC = 4, 6, 16, 48, 128
    vt0, vt1 = 14, 15
    a("v_lshrrev_b32 v16, 4, v0")
    a("v_and_b32 v17, 15, v0")
    a("v_bfe_u32 v18, v0, 2, 2")
    a("v_lshlrev_b32 v19, 3, v16"); a("v_add_u32 v19, v19, v18"); a("v_lshlrev_b32 v19, 8, v19")
    a("v_lshl_add_u32 v19, v18, 6, v19")
    a("v_and_b32 v20, 1, v16"); a("v_lshl_add_u32 v19, v20, 5, v19")
    a("v_and_b32 v21, 3, v0"); a(f"v_lshl_add_u32 v{vTRB}, v21, 3, v19")
    a("v_lshrrev_b32 v21, 1, v16"); a("v_lshl_add_u32 v21, v20, 1, v21")
    a("v_lshl_add_u32 v21, v21, 4, v17"); a(f"v_lshlrev_b32 v{vNAT}, 4, v21")
    a(f"v_lshlrev_b32 v{vLIN}, 4, v0")
    a("v_lshrrev_b32 v19, 1, v17"); a("v_xor_b32 v19, v19, v16"); a("v_lshlrev_b32 v19, 4, v19")
    a("v_lshl_add_u32 v19, v17, 7, v19")
    a(f"s_lshl_b32 s3, s{sRH}, 13"); a(f"s_add_u32 s3, s3, {SET0}"); a(f"v_add_u32 v{AB}, s3, v19")
    a(f"v_xor_b32 v{AB+1}, 64, v{AB}")
    a(f"s_lshl_b32 s3, s{sHH}, 14"); a(f"s_add_u32 s3, s3, {SET0+16384}"); a(f"v_add_u32 v{AA}, s3, v{vTRB}")
    for mb in range(1, 8): a(f"v_xor_b32 v{AA+mb}, {mb*32}, v{AA}")
    a(f"s_mov_b32 s{sPH}, 0"); a(f"s_mov_b32 s{sTRIG}, -1")
    a(f"s_mov_b32 s{sSET}, 0"); a(f"s_mov_b32 s{sD1}, 49152"); a(f"s_mov_b32 s{sD2}, -98304")
    a(f"s_mov_b32 s{sTH}, {f32(cfg.T)}")
    a("s_waitcnt lgkmcnt(0)")

    a.label("L_gemm")
    for r in range(128): a(f"v_mov_b32 v{ACC+r}, 0")
    a(f"s_mov_b32 s{sCNT}, 0")
    addr_regs = list(range(AB, AB+2)) + list(range(AA, AA+8))
    def g_reads(ks, st):
        def rb(nb): return lambda: a.dsop(f"ds_read_b128 {vr(FB+16*st+4*nb,4)}, v{AB+ks} offset:{nb*2048}", ('B', st, nb))
        def ra(mb, t): return lambda: a.dsop(f"ds_read_b64_tr_b16 {vr(FA+32*st+4*mb+2*t,2)}, v{AA+mb} offset:{(32*ks+4*t)*256}", ('A', st, mb))
        R = [rb(0), ra(0,0), ra(0,1), rb(1), rb(2), rb(3)]
        for mb in range(1, 8): R += [ra(mb,0), ra(mb,1)]
        return R
    def g_mfmas(st):
        R = []
        for mb in range(8):
            for nb in range(4):
                def f(mb=mb, nb=nb):
                    a.dswait(('A', st, mb), ('B', st, nb))
                    c = ACC + (mb*4+nb)*4
                    a(f"v_mfma_f32_16x16x32_bf16 {vr(c,4)}, {vr(FA+32*st+4*mb,4)}, {vr(FB+16*st+4*nb,4)}, {vr(c,4)}")
                R.append(f)
        return R
    a("s_barrier")
    if cfg.prof:
        lab = a.newlabel("st"); a(f"s_cmp_lg_u32 s{sPH}, 0"); a(f"s_cbranch_scc1 {lab}"); stamp(); a.label(lab)
    rd = g_reads(0, 0)
    for f in rd[:14]: f()
    a.dswait(('A', 0, 4))
    for f in rd[14:]: f()
    entry_ds = list(a.ds)
    a(".p2align 3")
    a.label("L_gloop")
    mm = g_mfmas(0)
    fill = [lambda: a(f"s_add_u32 s{sSET}, s{sSET}, 1"), lambda: a(f"s_cmp_eq_u32 s{sSET}, 3"),
            lambda: a(f"s_cselect_b32 s{sDELTA}, s{sD2}, s{sD1}"), lambda: a(f"s_cselect_b32 s{sSET}, 0, s{sSET}"),
            lambda: a(f"s_add_u32 s{sCNT}, s{sCNT}, 1"), lambda: a.dswait_all()] + g_reads(1, 1)
    interleave(a, mm, fill, [1]*26 + [0]*6)
    mm = g_mfmas(1)
    fill = [(lambda r=r: a(f"v_add_u32 v{r}, s{sDELTA}, v{r}")) for r in addr_regs]
    a.dswait(('A', 1, 4))
    interleave(a, mm[:5], fill, [2]*5)
    a.dswait_all()
    mm[5]()
    a(f"s_cmp_eq_u32 s{sCNT}, s{sTRIG}"); a("s_cbranch_scc1 L_gtrig")
    a("s_barrier")
    a.label("L_gtrig_ret")
    rd = g_reads(0, 0)
    fill = rd[:14] + rd[14:] + [lambda: a.dswait(('A', 0, 4)), lambda: a(f"s_cmp_lg_u32 s{sCNT}, 16")]
    interleave(a, mm[6:], fill, [1]*20 + [0]*4 + [1, 1])
    assert a.ds == entry_ds, (a.ds, entry_ds)
    a("s_cbranch_scc1 L_gloop")
    a.dswait_all()
    a(f"s_cmp_lg_u32 s{sPH}, 0"); a("s_cbranch_scc1 L_oepi")

    stamp()
    a(f"s_mov_b32 s3, {f32(math.log2(math.e) / math.sqrt(128.0))}")
    a(f"s_lshl_b32 s{sT0}, s{sHH}, 15"); a(f"s_lshl_b32 s{sT1}, s{sRH}, 14"); a(f"s_add_u32 s{sT0}, s{sT0}, s{sT1}")
    a(f"v_add_u32 v{vt0}, s{sT0}, v{vNAT}")
    a("s_nop 3")
    k = 0
    for p in range(4):
        for nb in range(4):
            t = 16 + 4 * (k % 4); k += 1
            for aa in range(2):
                c = ACC + ((2*p+aa)*4+nb)*4
                for r in range(4): a(f"v_mul_f32 v{c+r}, s3, v{c+r}")
            for aa in range(2):
                c = ACC + ((2*p+aa)*4+nb)*4
                a(f"v_cvt_pk_bf16_f32 v{t+2*aa}, v{c}, v{c+1}"); a(f"v_cvt_pk_bf16_f32 v{t+2*aa+1}, v{c+2}, v{c+3}")
            a("s_nop 1")
            a(f"v_permlane16_swap_b32 v{t}, v{t+2}"); a(f"v_permlane16_swap_b32 v{t+1}, v{t+3}")
            if k > 4 and k % 4 == 1: pass
            a.dsop(f"ds_write_b128 v{vt0}, {vr(t,4)} offset:{nb*4096 + p*1024}", 'qw')
            if k % 4 == 0: a.dswait_all()
    a.dswait_all()
    a("s_barrier")

    KA, VA = 4, 8
    Q, FR, SB, P, NEG = 16, 48, 80, 112, 120
    O = 128
    vL, vMX, vTM = 192, 194, 196
    vQA = 200
    vOT = 204
    a("v_and_b32 v16, 15, v0"); a("v_lshrrev_b32 v17, 4, v0")
    a("v_xor_b32 v17, v17, v16"); a("v_lshlrev_b32 v17, 4, v17")
    a("v_lshrrev_b32 v18, 2, v16"); a("v_and_b32 v19, 3, v16"); a("v_lshl_add_u32 v18, v18, 3, v19")
    a("v_lshl_add_u32 v17, v18, 8, v17")
    a(f"v_add_u32 v{KA}, {RING}, v17")
    for ks in range(1, 4): a(f"v_xor_b32 v{KA+ks}, {ks*64}, v{KA}")
    a(f"v_add_u32 v{VA}, {RING+16384}, v{vTRB}")
    for mb in range(1, 8): a(f"v_xor_b32 v{VA+mb}, {mb*32}, v{VA}")
    a(f"s_lshl_b32 s3, s{sWAVE}, 13"); a(f"v_add_u32 v{vQA}, s3, v{vLIN}")
    a(f"s_mov_b32 s{sCNT}, 0")
    a(f"s_mov_b32 s{sSET}, 0"); a(f"s_mov_b32 s{sD1}, 32768"); a(f"s_mov_b32 s{sD2}, -65536")
    a(f"s_lshl_b32 s3, s{sH0}, 15"); a(f"s_add_u32 s{sOST}, s{sOB}, s3"); a(f"s_lshl_b32 s3, s{sWAVE}, 12"); a(f"s_add_u32 s{sOST}, s{sOST}, s3")

    fi = [0]
    def kread(uh, aa, ks):
        i = fi[0] % 8; fi[0] += 1
        return i, (lambda: a.dsop(f"ds_read_b128 {vr(FR+4*i,4)}, v{KA+ks} offset:{(32*uh+4*aa)*256}", ('F', i)))
    def vread(uh, mb):
        i = fi[0] % 8; fi[0] += 1
        return i, [(lambda t=t: a.dsop(f"ds_read_b64_tr_b16 {vr(FR+4*i+2*t,2)}, v{VA+mb} offset:{(32*uh+4*t)*256}", ('F', i))) for t in range(2)]
    def sreg(buf, aa, nb): return SB + 16*buf + 4*(2*aa+nb)
    def qk_mfma(buf, aa, ks, nb, i, first):
        def f():
            a.dswait(('F', i))
            d = sreg(buf, aa, nb)
            c = ("0" if first else vr(NEG+4*nb, 4)) if ks == 0 else vr(d, 4)
            a(f"v_mfma_f32_16x16x32_bf16 {vr(d,4)}, {vr(FR+4*i,4)}, {vr(Q+16*nb+4*ks,4)}, {c}")
        return f
    def pv_mfma(mb, nb, i):
        def f():
            a.dswait(('F', i))
            d = O + (mb*2+nb)*4
            a(f"v_mfma_f32_16x16x32_bf16 {vr(d,4)}, {vr(FR+4*i,4)}, {vr(P+4*nb,4)}, {vr(d,4)}")
        return f
    def ex_ops(buf):
        R = []
        for nb in range(2):
            for aa in range(2):
                s = sreg(buf, aa, nb)
                for r in range(4): R.append(lambda s=s, r=r: a(f"v_exp_f32 v{s+r}, v{s+r}"))
        C = []
        for nb in range(2):
            for aa in range(2):
                s = sreg(buf, aa, nb)
                for h in range(2): C.append(lambda s=s, nb=nb, aa=aa, h=h: a(f"v_cvt_pk_bf16_f32 v{P+4*nb+2*aa+h}, v{s+2*h}, v{s+2*h+1}"))
        out = R[:8]
        for i in range(4): out += [R[8+2*i], R[9+2*i], C[i]]
        out += C[4:]
        return out
    def add_ops(buf):
        R = []
        for aa in range(2):
            for r in range(4):
                for nb in range(2):
                    s = sreg(buf, aa, nb)
                    R.append(lambda s=s, r=r, nb=nb: a(f"v_add_f32 v{vL+nb}, v{vL+nb}, v{s+r}"))
        return R
    def max_ops(buf):
        s = SB + 16*buf
        R = [lambda: a(f"v_max3_f32 v{vMX}, v{s}, v{s+1}, v{s+2}"), lambda: a(f"v_max3_f32 v{vMX+1}, v{s+3}, v{s+4}, v{s+5}")]
        for i in range(5):
            R.append(lambda i=i: a(f"v_max3_f32 v{vMX+i%2}, v{vMX+i%2}, v{s+6+2*i}, v{s+7+2*i}"))
        R.append(lambda: a(f"v_max_f32 v{vMX}, v{vMX}, v{vMX+1}"))
        R.append(lambda: a(f"v_cmp_lt_f32 vcc, s{sTH}, v{vMX}"))
        return R
    def xlane(op, r, t):
        for sw in ("v_permlane16_swap_b32", "v_permlane32_swap_b32"):
            a(f"v_mov_b32 v{t}, v{r}"); a("s_nop 1"); a(f"{sw} v{r}, v{t}"); a("s_nop 1"); a(f"{op} v{r}, v{r}, v{t}")
    def qmax(buf):
        for nb in range(2):
            s0, s1 = sreg(buf, 0, nb), sreg(buf, 1, nb)
            a(f"v_max3_f32 v{vMX+nb}, v{s0}, v{s0+1}, v{s0+2}")
            a(f"v_max3_f32 v{vMX+nb}, v{vMX+nb}, v{s0+3}, v{s1}")
            a(f"v_max3_f32 v{vMX+nb}, v{vMX+nb}, v{s1+1}, v{s1+2}")
            a(f"v_max_f32 v{vMX+nb}, v{vMX+nb}, v{s1+3}")
        for nb in range(2): xlane("v_max_f32", vMX+nb, vTM)
    slow_paths = []
    def check(buf):
        lab = a.newlabel("slow"); a(f"s_cbranch_vccnz {lab}"); a.label(lab + "_ret"); slow_paths.append((lab, buf))
    LA = 4
    def slot(mf, nxt_reads, own_reads, valu, pre_next=None):
        seq = own_reads + nxt_reads
        nv = len(valu); k = 0
        for pair in range(8):
            mf[2*pair]()
            if pair == 8 - LA and pre_next: pre_next()
            rds = seq[pair] if pair < len(seq) else []
            if rds: rds[0]()
            n1 = (nv * (2*pair+1)) // 16 - k
            for _ in range(n1): valu[k](); k += 1
            mf[2*pair+1]()
            for r in rds[1:]: r()
            n1 = (nv * (2*pair+2)) // 16 - k
            for _ in range(n1): valu[k](); k += 1
    def kfrags(uh):
        F = [kread(uh, aa, ks) for ks in range(4) for aa in range(2)]
        return [f[0] for f in F], [[f[1]] for f in F]
    def vfrags(uh):
        F = [vread(uh, mb) for mb in range(8)]
        return [f[0] for f in F], [f[1] for f in F]
    def qk_list(buf, idx, first=False):
        R = []
        n = 0
        for ks in range(4):
            for aa in range(2):
                for nb in range(2): R.append(qk_mfma(buf, aa, ks, nb, idx[n], first))
                n += 1
        return R
    def pv_list(idx):
        return [pv_mfma(mb, nb, idx[mb]) for mb in range(8) for nb in range(2)]

    a.label("L_item")
    for nb in range(2):
        for ks in range(4):
            a.dsop(f"ds_read_b128 {vr(Q+16*nb+4*ks,4)}, v{vQA} offset:{nb*4096+ks*1024}", 'q')
    a(f"v_add_u32 v{vQA}, 32768, v{vQA}")
    for r in range(64): a(f"v_mov_b32 v{O+r}, 0")
    a(f"v_mov_b32 v{vL}, 0"); a(f"v_mov_b32 v{vL+1}, 0")
    a.dswait_all()
    a("s_barrier")
    if cfg.prof:
        lab = a.newlabel("st"); a(f"s_cmp_lg_u32 s{sCNT}, 0"); a(f"s_cbranch_scc1 {lab}"); stamp(); a.label(lab)
    fi[0] = 0
    idx0, rd0 = kfrags(0)
    idx1, rd1 = kfrags(1)
    for r in rd0[:LA]: r[0]()
    slot(qk_list(0, idx0, first=True), rd1[:LA], rd0[LA:], [])
    a("s_nop 7")
    qmax(0)
    for nb in range(2):
        for aa in range(2):
            s = sreg(0, aa, nb)
            for r in range(4): a(f"v_sub_f32 v{s+r}, v{s+r}, v{vMX+nb}")
        for r in range(4): a(f"v_sub_f32 v{NEG+4*nb+r}, 0, v{vMX+nb}")
    a("s_nop 1")

    def body(last):
        global_idx1, global_rd1 = idx1, rd1
        fi[0] = 16
        iv0, rv0 = vfrags(0)
        def bar_a():
            if not last:
                a(f"s_cmp_eq_u32 s{sCNT}, 9"); a("s_cbranch_scc1 L_atrig")
            a("s_barrier")
            if not last: a.label("L_atrig_ret")
        slot(qk_list(1, global_idx1), rv0[:LA], global_rd1[LA:], ex_ops(0), bar_a)
        a("s_nop 0")
        scal = [lambda: a(f"s_add_u32 s{sSET}, s{sSET}, 1"), lambda: a(f"s_cmp_eq_u32 s{sSET}, 3"),
                lambda: a(f"s_cselect_b32 s{sDELTA}, s{sD2}, s{sD1}"), lambda: a(f"s_cselect_b32 s{sSET}, 0, s{sSET}"),
                lambda: a(f"s_add_u32 s{sCNT}, s{sCNT}, 1")]
        kupd = [(lambda r=r: a(f"v_add_u32 v{r}, s{sDELTA}, v{r}")) for r in range(KA, KA+4)]
        vupd = [(lambda r=r: a(f"v_add_u32 v{r}, s{sDELTA}, v{r}")) for r in range(VA, VA+8)]
        if not last:
            ik0, rk0 = kfrags(0)
            slot(pv_list(iv0), rk0[:LA], rv0[LA:], scal + kupd + add_ops(0) + max_ops(1), lambda: a("s_barrier"))
            check(1)
            iv1, rv1 = vfrags(1)
            slot(qk_list(0, ik0), rv1[:LA], rk0[LA:], ex_ops(1))
            a("s_nop 0")
            ik1, rk1 = kfrags(1)
            assert ik1 == global_idx1
            slot(pv_list(iv1), rk1[:LA], rv1[LA:], add_ops(1) + vupd + max_ops(0))
            check(0)
        else:
            fi[0] += 8
            iv1, rv1 = vfrags(1)
            slot(pv_list(iv0), rv1[:LA], rv0[LA:], scal + kupd + add_ops(0) + max_ops(1))
            check(1)
            for f in ex_ops(1): f()
            a("s_nop 1")
            slot(pv_list(iv1), [], rv1[LA:], add_ops(1) + vupd)
    entry_ds = list(a.ds)
    a(".p2align 3")
    a.label("L_aloop")
    body(False)
    assert a.ds == entry_ds, (a.ds, entry_ds)
    a(f"s_and_b32 s3, s{sCNT}, 7"); a("s_cmp_lg_u32 s3, 7"); a("s_cbranch_scc1 L_aloop")
    body(True)
    for nb in range(2): xlane("v_add_f32", vL+nb, vTM)
    a(f"v_rcp_f32 v{vL}, v{vL}"); a(f"v_rcp_f32 v{vL+1}, v{vL+1}")
    a("s_nop 0")
    k = 0
    for p in range(4):
        for nb in range(2):
            t = vOT + 4 * (k % 4); k += 1
            for aa in range(2):
                c = O + ((2*p+aa)*2+nb)*4
                for r in range(4): a(f"v_mul_f32 v{c+r}, v{vL+nb}, v{c+r}")
            for aa in range(2):
                c = O + ((2*p+aa)*2+nb)*4
                a(f"v_cvt_pk_bf16_f32 v{t+2*aa}, v{c}, v{c+1}"); a(f"v_cvt_pk_bf16_f32 v{t+2*aa+1}, v{c+2}, v{c+3}")
            a("s_nop 1")
            a(f"v_permlane16_swap_b32 v{t}, v{t+2}"); a(f"v_permlane16_swap_b32 v{t+1}, v{t+3}")
            if p == 2 and nb == 0: a(f"s_add_u32 s{sOST}, s{sOST}, 16384")
            a(f"buffer_store_dwordx4 {vr(t,4)}, v{vNAT}, s[{S_WS}:{S_WS+3}], s{sOST} offen offset:{nb*2048+(p&1)*1024} {cfg.fo}")
    a(f"s_add_u32 s{sOST}, s{sOST}, 16384")
    a(f"s_cmp_lg_u32 s{sCNT}, 16"); a("s_cbranch_scc1 L_item")
    stamp()

    a(f"s_lshl_b32 s3, s{sRH}, 13"); a(f"s_add_u32 s3, s3, {SET0}"); a(f"v_add_u32 v{AB}, s3, v{vLIN}")
    a(f"v_add_u32 v{AB+1}, 1024, v{AB}")
    for dq in range(4):
        a(f"s_xor_b32 s{sT0}, s{sG}, {dq}")
        a(f"s_lshr_b32 s{sT1}, s{sT0}, 1"); a(f"s_lshl_b32 s{sT1}, s{sT1}, 14"); a(f"s_add_u32 s{sT1}, s{sT1}, {SET0+16384}")
        a(f"s_and_b32 s{sT0}, s{sT0}, 1"); a(f"s_lshl_b32 s{sT0}, s{sT0}, 1"); a(f"s_add_u32 s{sT0}, s{sT0}, s{sHH}"); a(f"s_lshl_b32 s{sT0}, s{sT0}, 6")
        a(f"v_xor_b32 v{AA+2*dq}, s{sT0}, v{vTRB}")
        a(f"v_add_u32 v{AA+2*dq}, s{sT1}, v{AA+2*dq}")
        a(f"v_xor_b32 v{AA+2*dq+1}, 32, v{AA+2*dq}")
    a(f"s_mov_b32 s{sPH}, 1"); a(f"s_mov_b32 s{sTRIG}, 2")
    a(f"s_mov_b32 s{sSET}, 2"); a(f"s_mov_b32 s{sD1}, -49152"); a(f"s_mov_b32 s{sD2}, 98304")
    a("s_branch L_gemm")

    def signal(grp, val):
        lab = a.newlabel("nosig")
        a(f"s_cmp_lg_u32 s{sWAVE}, 0"); a(f"s_cbranch_scc1 {lab}")
        a(f"s_mov_b64 s[{sEX}:{sEX+1}], exec"); a("s_mov_b64 exec, 1")
        a(f"v_mov_b32 v{vt0 if val != 1 else vTM}, {val}")
        a(f"buffer_atomic_add v{vt0 if val != 1 else vTM}, off, s[{S_DBG}:{S_DBG+3}], s{grp} sc1")
        a(f"s_mov_b64 exec, s[{sEX}:{sEX+1}]")
        a("s_nop 3")
        a.label(lab)
    a.label("L_atrig")
    a("s_waitcnt vmcnt(0)"); a("s_barrier")
    signal(sGRP1, 1)
    a("s_branch L_atrig_ret")
    a.label("L_gtrig")
    a("s_waitcnt vmcnt(0)"); a("s_barrier")
    signal(sGRP1, 0x100)
    a("s_branch L_gtrig_ret")
    for lab, buf in slow_paths:
        a.label(lab)
        a("s_nop 7")
        qmax(buf)
        for nb in range(2):
            a(f"v_max_f32 v{vMX+nb}, 0, v{vMX+nb}")
        for nb in range(2):
            a(f"v_sub_f32 v{vTM+nb}, 0, v{vMX+nb}")
            a(f"v_exp_f32 v{vTM+nb}, v{vTM+nb}")
        for nb in range(2):
            for aa in range(2):
                s = sreg(buf, aa, nb)
                for r in range(4): a(f"v_sub_f32 v{s+r}, v{s+r}, v{vMX+nb}")
            for r in range(4): a(f"v_sub_f32 v{NEG+4*nb+r}, v{NEG+4*nb+r}, v{vMX+nb}")
            a(f"v_mul_f32 v{vL+nb}, v{vL+nb}, v{vTM+nb}")
        for mb in range(8):
            for nb in range(2):
                for r in range(4): a(f"v_mul_f32 v{O+(mb*2+nb)*4+r}, v{O+(mb*2+nb)*4+r}, v{vTM+nb}")
        a("s_nop 1")
        a(f"s_branch {lab}_ret")

    a.label("L_oepi")
    stamp()
    def inbox(dst, gx):
        a(f"s_and_b32 s3, s{sXCD}, 4"); a(f"s_add_u32 s3, s3, s{gx}"); a("s_lshl_b32 s3, s3, 3"); a(f"s_add_u32 s3, s3, s{sB}")
        a("s_lshl_b32 s3, s3, 2"); a(f"s_add_u32 s3, s3, s{sCT}"); a("s_mul_i32 s3, s3, 49152")
        a(f"s_lshl_b32 s{dst}, s{sWAVE}, 12"); a(f"s_add_u32 s{dst}, s{dst}, s3"); a(f"s_add_u32 s{dst}, s{dst}, {EXCH}")
    k = 0
    for dq in range(1, 4):
        a(f"s_xor_b32 s{sT1}, s{sG}, {dq}")
        inbox(sT0, sT1)
        if dq > 1: a(f"s_add_u32 s{sT0}, s{sT0}, {(dq-1)*16384}")
        for nb in range(4):
            t = 16 + 4 * k; k += 1
            for aa in range(2):
                c = ACC + ((2*dq+aa)*4+nb)*4
                a(f"v_cvt_pk_bf16_f32 v{t+2*aa}, v{c}, v{c+1}"); a(f"v_cvt_pk_bf16_f32 v{t+2*aa+1}, v{c+2}, v{c+3}")
            a(f"buffer_store_dwordx4 {vr(t,4)}, v{vLIN}, s[{S_WS}:{S_WS+3}], s{sT0} offen offset:{nb*1024} sc1")
    inbox(sT0, sG)
    a("v_and_b32 v4, 15, v0"); a("v_lshlrev_b32 v4, 12, v4")
    a(f"v_lshrrev_b32 v5, 8, v{vNAT}"); a("v_lshl_add_u32 v4, v5, 4, v4")
    a(f"s_lshl_b32 s{sT2}, s{sB}, 19"); a(f"s_lshl_b32 s3, s{sRH}, 18"); a(f"s_add_u32 s{sT2}, s{sT2}, s3")
    a(f"s_lshl_b32 s3, s{sBR}, 11"); a(f"s_add_u32 s{sT2}, s{sT2}, s3")
    a(f"s_lshl_b32 s3, s{sCT}, 9"); a(f"s_add_u32 s{sT2}, s{sT2}, s3")
    a(f"s_lshl_b32 s3, s{sG}, 7"); a(f"s_add_u32 s{sT2}, s{sT2}, s3")
    a(f"s_lshl_b32 s3, s{sHH}, 6"); a(f"s_add_u32 s{sT2}, s{sT2}, s3")
    a("s_waitcnt vmcnt(0)")
    a("s_barrier")
    stamp()
    signal(sGRP2, 0x10000)
    a(f"s_cmp_lg_u32 s{sWAVE}, 0"); a("s_cbranch_scc1 L_x2done")
    a(f"s_mov_b32 s{sSPIN}, 0")
    a.label("L_x2poll")
    a(f"buffer_load_dword v5, off, s[{S_DBG}:{S_DBG+3}], s{sGRP2} sc1")
    a(f"s_add_u32 s{sSPIN}, s{sSPIN}, 1")
    a("s_waitcnt vmcnt(0)")
    a("v_readfirstlane_b32 s3, v5")
    a("s_lshr_b32 s3, s3, 16"); a("s_cmp_ge_u32 s3, 4"); a("s_cbranch_scc1 L_x2done")
    a(f"s_cmp_lt_u32 s{sSPIN}, 0x40000"); a("s_cbranch_scc1 L_x2poll")
    a.label("L_x2done")
    a("s_barrier")
    stamp()
    for dq in range(3):
        for nb in range(4):
            t = 16 + 4 * (dq*4+nb)
            a(f"buffer_load_dwordx4 {vr(t,4)}, v{vLIN}, s[{S_WS}:{S_WS+3}], s{sT0} offen offset:{nb*1024} sc1")
        if dq < 2: a(f"s_add_u32 s{sT0}, s{sT0}, 16384")
    a("s_mov_b32 s3, 0xffff0000")
    for dq in range(3):
        for nb in range(4):
            t = 16 + 4 * (dq*4+nb)
            a(f"s_waitcnt vmcnt({11 - (dq*4+nb) + (nb if dq == 2 else 0)})")
            for aa in range(2):
                c = ACC + (aa*4+nb)*4
                for h in range(2):
                    a(f"v_lshlrev_b32 v6, 16, v{t+2*aa+h}"); a(f"v_and_b32 v7, s3, v{t+2*aa+h}")
                    a(f"v_add_f32 v{c+2*h}, v{c+2*h}, v6"); a(f"v_add_f32 v{c+2*h+1}, v{c+2*h+1}, v7")
            if dq == 2:
                for aa in range(2):
                    c = ACC + (aa*4+nb)*4
                    a(f"v_cvt_pk_bf16_f32 v{t+2*aa}, v{c}, v{c+1}"); a(f"v_cvt_pk_bf16_f32 v{t+2*aa+1}, v{c+2}, v{c+3}")
                a("s_nop 1")
                a(f"v_permlane16_swap_b32 v{t}, v{t+2}"); a(f"v_permlane16_swap_b32 v{t+1}, v{t+3}")
                a(f"buffer_store_dwordx4 {vr(t,4)}, v4, s[{S_OUT}:{S_OUT+3}], s{sT2} offen")
                a(f"s_add_u32 s{sT2}, s{sT2}, 65536")
    if cfg.padto:
        a("s_waitcnt vmcnt(0)")
        a("s_memrealtime s[100:101]"); a("s_waitcnt lgkmcnt(0)"); a("s_sub_u32 s3, s100, s98")
        a(f"s_cmp_lg_u32 s{sG}, 0"); a("s_cbranch_scc1 L_pad"); a(f"s_cmp_lg_u32 s{sWAVE}, 0"); a("s_cbranch_scc1 L_pad")
        a("s_lshr_b32 s3, s3, 2"); a("s_lshl_b32 s3, s3, 20"); a("s_mov_b64 exec, 1"); a("v_mov_b32 v4, s3")
        a(f"buffer_atomic_add v4, off, s[{S_DBG}:{S_DBG+3}], s{sGRP2} sc1")
        a.label("L_pad")
        a("s_memrealtime s[100:101]"); a("s_waitcnt lgkmcnt(0)"); a("s_sub_u32 s3, s100, s98")
        a(f"s_cmp_lt_u32 s3, {cfg.padto}"); a("s_cbranch_scc1 L_pad")
    if cfg.prof:
        a("s_waitcnt vmcnt(0)")
        stamp()
        a(f"s_cmp_lg_u32 s{sWAVE}, 0"); a("s_cbranch_scc1 L_end")
        a("s_lshl_b32 s3, s2, 6"); a(f"s_add_u32 s3, s3, {48*M}")
        a("s_mov_b64 exec, 1")
        for i in range(nst[0]):
            a(f"v_mov_b32 v4, s{sSTAMP+2*i}")
            a(f"buffer_store_dword v4, off, s[{S_WS}:{S_WS+3}], s3 offset:{4*i}")
            a("s_nop 1")
    a("s_endpgm")

    a.label("L_loader")
    a(f"s_sub_u32 s{sWAVE}, s{sWAVE}, 4")
    VX, VW, VK, VV, VWO, VL, VP = 4, 8, 12, 16, 20, 24, 25
    a("v_lshrrev_b32 v1, 3, v0"); a("v_and_b32 v2, 7, v0"); a("v_lshrrev_b32 v3, 4, v0")
    a(f"s_lshl_b32 s3, s{sWAVE}, 16")
    for q in range(4):
        a(f"v_add_u32 v30, {4*q}, v3"); a("v_and_b32 v30, 7, v30"); a("v_xor_b32 v30, v30, v2"); a("v_lshlrev_b32 v30, 4, v30")
        a(f"v_add_u32 v31, {8*q}, v1"); a("v_lshlrev_b32 v31, 11, v31"); a("v_add3_u32 v30, v30, v31, s3")
        a(f"v_subrev_u32 v{VX+q}, {q*1024}, v30")
    a("v_and_b32 v1, 15, v0"); a("v_lshlrev_b32 v30, 2, v3"); a("v_xor_b32 v2, v1, v30")
    a(f"s_lshl_b32 s3, s{sWAVE}, 17")
    for q in range(4):
        a(f"v_xor_b32 v30, {((q>>1)&1)<<1}, v2"); a("v_lshlrev_b32 v30, 4, v30")
        a(f"v_add_u32 v31, {4*q}, v3"); a("v_lshlrev_b32 v31, 13, v31"); a("v_add3_u32 v30, v30, v31, s3")
        a(f"v_subrev_u32 v{VW+q}, {q*1024}, v30")
    a(f"s_lshl_b32 s{sXB}, s{sB}, 18")
    a(f"s_lshl_b32 s{sWB}, s{sH0}, 8")
    a(f"s_lshl_b32 s{sT5}, s{sWAVE}, 12")
    a(f"s_add_u32 s{sLDS}, s{sT5}, {SET0}")
    a(f"s_mov_b32 s{sSET}, 0"); a(f"s_mov_b32 s{sCNT}, 0"); a(f"s_mov_b32 s{sD1}, 49152"); a(f"s_mov_b32 s{sD2}, -98304")
    a("s_waitcnt lgkmcnt(0)")
    def tile(ldsoff, vbase, vstep, srd, so, fl):
        a(f"s_add_u32 m0, s{sLDS}, {ldsoff}")
        a("s_nop 0")
        for q in range(4):
            a(f"buffer_load_dwordx4 v{vbase+vstep*q}, s[{srd}:{srd+3}], s{so} offen offset:{q*1024} {fl} lds")
    def adv(n=3):
        a(f"s_add_u32 s{sCNT}, s{sCNT}, 1")
        a(f"s_add_u32 s{sSET}, s{sSET}, 1"); a(f"s_cmp_eq_u32 s{sSET}, {n}")
        a(f"s_cselect_b32 s{sDELTA}, s{sD2}, s{sD1}"); a(f"s_cselect_b32 s{sSET}, 0, s{sSET}"); a(f"s_add_u32 s{sLDS}, s{sLDS}, s{sDELTA}")
    def q_issue():
        rot = cfg.rot
        if rot:
            a(f"s_add_u32 s3, s{sCNT}, s{sROT}"); a(f"s_and_b32 s3, s3, {rot-1}"); a(f"s_and_b32 s{sT0}, s{sCNT}, {15 & ~(rot-1)}"); a(f"s_or_b32 s3, s3, s{sT0}")
        else:
            a(f"s_mov_b32 s3, s{sCNT}")
        a(f"s_lshl_b32 s{sT0}, s3, 7"); a(f"s_add_u32 s{sT0}, s{sT0}, s{sXB}")
        a(f"s_lshl_b32 s{sT1}, s3, 19"); a(f"s_add_u32 s{sT1}, s{sT1}, s{sWB}"); a(f"s_add_u32 s{sT2}, s{sT1}, 256")
        tile(0, VX, 1, S_X, sT0, cfg.fx); tile(16384, VW, 1, S_WQ, sT1, cfg.fw); tile(32768, VW, 1, S_WQ, sT2, cfg.fw)
        adv()
    q_issue()
    a(f"s_lshl_b32 s3, s{sWAVE}, 1")
    for q in range(4):
        a(f"s_add_u32 s{sT3}, s3, {q>>1}"); a(f"s_and_b32 s{sT3}, s{sT3}, 3"); a(f"s_lshl_b32 s{sT3}, s{sT3}, 2")
        a("v_xor_b32 v30, v1, v3"); a(f"v_xor_b32 v30, s{sT3}, v30"); a("v_lshlrev_b32 v30, 4, v30")
        a("v_lshl_add_u32 v30, v3, 8, v30"); a(f"v_add_u32 v{VK+q}, s{sT5}, v30")
        a(f"v_xor_b32 v30, {((q>>1)&1)<<1}, v2"); a("v_lshlrev_b32 v30, 4, v30")
        a("v_lshl_add_u32 v31, v3, 8, v30"); a(f"v_add_u32 v{VV+q}, s{sT5}, v31")
        a(f"v_add_u32 v31, {4*q}, v3"); a("v_lshl_add_u32 v30, v31, 11, v30")
        a(f"s_lshl_b32 s{sT3}, s{sWAVE}, 15"); a(f"v_add_u32 v30, s{sT3}, v30")
        a(f"v_subrev_u32 v{VWO+q}, {q*1024}, v30")
    a("v_lshlrev_b32 v30, 4, v0"); a(f"v_add_u32 v{VL}, s{sT5}, v30")
    a(f"s_lshl_b32 s3, s{sB}, 5"); a(f"s_add_u32 s3, s3, s{sH0}"); a(f"s_lshl_b32 s{sKV}, s3, 17")
    a.label("L_yq")
    q_issue()
    a("s_waitcnt vmcnt(12)")
    a("s_barrier")
    a(f"s_cmp_lt_u32 s{sCNT}, 16"); a("s_cbranch_scc1 L_yq")
    a(f"s_add_u32 s{sLDS}, s{sT5}, {RING}")
    a(f"s_mov_b32 s{sSET}, 0"); a(f"s_mov_b32 s{sCNT}, 0"); a(f"s_mov_b32 s{sD1}, 32768"); a(f"s_mov_b32 s{sD2}, -65536")
    def ktile(): tile(0, VK, 1, S_K, sKV, cfg.fkv)
    def vtile():
        tile(16384, VV, 1, S_V, sKV, cfg.fkv)
        a(f"s_add_u32 s{sKV}, s{sKV}, 16384")
        adv()
    ktile(); vtile(); ktile()
    a("s_waitcnt vmcnt(12)"); a("s_barrier")
    vtile()
    a("s_barrier")
    a("s_barrier")
    a.label("L_ya")
    a("s_waitcnt vmcnt(12)"); a("s_barrier")
    ktile()
    a("s_waitcnt vmcnt(12)"); a("s_barrier")
    vtile()
    a(f"s_cmp_lt_u32 s{sCNT}, 16"); a("s_cbranch_scc1 L_ya")
    def poll_issue():
        a(f"buffer_load_dword v{VP}, off, s[{S_DBG}:{S_DBG+3}], s{sGRP1} sc1")
    def poll_check(shift):
        done = a.newlabel("pd"); spin = a.newlabel("ps")
        a(f"s_mov_b32 s{sSPIN}, 0")
        a.label(spin)
        a(f"v_readfirstlane_b32 s3, v{VP}")
        a(f"s_bfe_u32 s3, s3, {(8 << 16) | shift}"); a("s_cmp_ge_u32 s3, 4"); a(f"s_cbranch_scc1 {done}")
        poll_issue()
        a(f"s_add_u32 s{sSPIN}, s{sSPIN}, 1")
        a("s_waitcnt vmcnt(0)")
        a(f"s_cmp_lt_u32 s{sSPIN}, 0x40000"); a(f"s_cbranch_scc1 {spin}")
        a.label(done)
    a(f"s_add_u32 s{sLDS}, s{sT5}, {SET0}")
    a(f"s_mov_b32 s{sSET}, 2"); a(f"s_mov_b32 s{sCNT}, 0"); a(f"s_mov_b32 s{sD1}, -49152"); a(f"s_mov_b32 s{sD2}, 98304")
    a(f"s_lshl_b32 s{sWB}, s{sCT}, 9")
    def o_addr():
        a(f"s_lshr_b32 s3, s{sCNT}, 1"); a(f"s_add_u32 s3, s3, s{sJJ}"); a("s_and_b32 s3, s3, 3"); a("s_lshl_b32 s3, s3, 1")
        a(f"s_lshr_b32 s{sT0}, s{sCNT}, 3"); a(f"s_add_u32 s3, s3, s{sT0}")
        a(f"s_lshl_b32 s{sT0}, s{sG}, 3"); a(f"s_add_u32 s3, s3, s{sT0}"); a("s_lshl_b32 s3, s3, 1")
        a(f"s_and_b32 s{sT0}, s{sCNT}, 1"); a(f"s_add_u32 s3, s3, s{sT0}")
        a(f"s_lshl_b32 s{sT0}, s3, 14"); a(f"s_add_u32 s{sT0}, s{sT0}, s{sOB}")
        a(f"s_lshl_b32 s{sT1}, s3, 17"); a(f"s_add_u32 s{sT1}, s{sT1}, s{sWB}"); a(f"s_add_u32 s{sT2}, s{sT1}, 256")
    def otile(): tile(0, VL, 0, S_WS, sT0, 'sc1')
    def w0tile(): tile(16384, VWO, 1, S_WO, sT1, cfg.fwo)
    def w1tile(): tile(32768, VWO, 1, S_WO, sT2, cfg.fwo)
    o_addr()
    a("s_waitcnt vmcnt(12)"); a("s_barrier")
    poll_issue()
    a("s_waitcnt vmcnt(9)"); a("s_barrier")
    w0tile()
    a("s_waitcnt vmcnt(9)"); a("s_barrier")
    w1tile()
    a("s_waitcnt vmcnt(8)"); a("s_barrier")
    poll_check(0)
    otile()
    adv()
    a.label("L_yo")
    o_addr()
    lab = a.newlabel("np"); a(f"s_cmp_lg_u32 s{sCNT}, 7"); a(f"s_cbranch_scc1 {lab}"); poll_issue(); a.label(lab)
    otile(); w0tile(); w1tile()
    adv()
    a("s_waitcnt vmcnt(12)")
    lab = a.newlabel("nc"); a(f"s_cmp_lg_u32 s{sCNT}, 8"); a(f"s_cbranch_scc1 {lab}"); poll_check(8); a.label(lab)
    a("s_barrier")
    a(f"s_cmp_lt_u32 s{sCNT}, 16"); a("s_cbranch_scc1 L_yo")
    a("s_waitcnt vmcnt(0)")
    a("s_barrier")
    a("s_barrier")
    a.label("L_end")
    a("s_endpgm")
    k = NAME + "_kernel"
    return header(["; @launch grid=(256,1,1) block=(512,1,1) lds=163840"]) + kernel_begin(k) + a.text() + \
        '.section .rodata,"a"\n.p2align 6\n' + descriptor(k, 256)

if __name__ == "__main__":
    out = sys.argv[1] if len(sys.argv) > 1 else f"cdna_kernels/{NAME}.s"
    kw = {}
    for x in sys.argv[2:]:
        k, v = x.split("=")
        try: v = eval(v)
        except Exception: pass
        kw[k] = v
    open(out, "w").write(gen(Cfg(**kw)))
    print("wrote", out)
```

```python
NAME = "concat_heads__mha_block_cached__gqa_block_cached__near_ridge"

def vr(b, n=1):
    return f"v{b}" if n == 1 else f"v[{b}:{b+n-1}]"
def sr(b, n=1):
    return f"s{b}" if n == 1 else f"s[{b}:{b+n-1}]"

class Asm:
    def __init__(self):
        self.L = []
        self.ds = []
        self.uid = 0
        self.vm = []
    def __call__(self, s):
        self.L.append("    " + s)
    def label(self, s):
        self.L.append(s + ":")
    def comment(self, s):
        self.L.append("    ; " + s)
    def newlabel(self, p):
        self.uid += 1
        return f"L_{p}_{self.uid}"
    def dsop(self, s, tag):
        self(s)
        self.ds.append(tag)
    def dswait(self, *tags):
        last = -1
        for i, t in enumerate(self.ds):
            if t in tags:
                last = i
        if last < 0:
            return
        n = len(self.ds) - 1 - last
        assert n <= 15, f"lgkmcnt overflow {n}"
        self(f"s_waitcnt lgkmcnt({n})")
        self.ds = self.ds[last + 1:]
    def dswait_all(self):
        if self.ds:
            self("s_waitcnt lgkmcnt(0)")
        self.ds = []
    def vmop(self, s, tag):
        self(s)
        self.vm.append(tag)
    def vmwait(self, *tags):
        last = -1
        for i, t in enumerate(self.vm):
            if t in tags:
                last = i
        if last < 0:
            return
        n = len(self.vm) - 1 - last
        assert n <= 63, f"vmcnt overflow {n}"
        self(f"s_waitcnt vmcnt({n})")
        self.vm = self.vm[last + 1:]
    def text(self):
        return "\n".join(self.L) + "\n"

def interleave(a, main, fillers, pattern=None):
    n = len(main)
    if pattern is None:
        pattern = [(len(fillers) * (i + 1)) // n - (len(fillers) * i) // n for i in range(n)]
    k = 0
    for i, m in enumerate(main):
        m()
        for _ in range(pattern[i]):
            if k < len(fillers):
                fillers[k](); k += 1
    while k < len(fillers):
        fillers[k](); k += 1

def header(launch_lines):
    ref = open(f"cdna_kernels/{NAME}.s.ref").read().splitlines()
    out = []
    for l in ref:
        if l.startswith("; @launch"):
            out += launch_lines
        elif l.startswith(";"):
            out.append(l)
        else:
            break
    out.append('.amdgcn_target "amdgcn-amd-amdhsa--gfx950"')
    out.append(".text")
    return "\n".join(out) + "\n"

def kernel_begin(name):
    return f".globl {name}\n.p2align 8\n.type {name},@function\n{name}:\n"

def descriptor(name, vgpr, sgpr=102, accum=None):
    if accum is None:
        accum = min(256, (vgpr + 3) // 4 * 4)
    return f""".amdhsa_kernel {name}
  .amdhsa_next_free_vgpr {vgpr}
  .amdhsa_next_free_sgpr {sgpr}
  .amdhsa_accum_offset {accum}
  .amdhsa_group_segment_fixed_size 0
  .amdhsa_kernarg_size 104
  .amdhsa_user_sgpr_count 2
  .amdhsa_user_sgpr_kernarg_segment_ptr 1
  .amdhsa_system_sgpr_workgroup_id_x 1
  .amdhsa_float_denorm_mode_32 3
.end_amdhsa_kernel
"""
```

```python
import sys, math, struct
sys.path.insert(0, "gen")
from asmlib import *
M = 1 << 20

def f32(x):
    return "0x%08x" % struct.unpack("<I", struct.pack("<f", x))[0]

S_X, S_K, S_V, S_WQ, S_WO, S_OUT, S_WS, S_DBG = 8, 12, 16, 20, 24, 28, 32, 36
sXCD, sJ, sBR, sG, sB, sJJ, sWAVE, sH0, sROT, sRH, sHH = range(40, 51)
sCNT, sSET, sDELTA, sD1, sD2, sPH, sTRIG, sDV, sGRP1, sGRP2 = range(51, 61)
sT0, sT1, sT2, sT3, sT4, sT5 = range(61, 67)
sXB, sWB, sKV, sOB, sCT, sSPIN, sOST, sFL = range(67, 75)
sEX = 76
sC2 = 78
sSTAMP = 80

SET0 = 16384
RING = 65536
EXCH = 16 * M
FLAG = 30 * M
BIAS = 7.0

class Cfg:
    def __init__(self, **kw):
        self.prof = False; self.nstamps = 10
        self.fx = ''; self.fw = ''; self.fkv = 'nt'; self.fo = 'sc1'; self.fwo = ''
        self.rot = 2
        self.prio = 0; self.yprio = 0; self.psleep = 4; self.rtrig = 1
        self.regT = (2, 5, 8, 11, 14)
        self.pf = (5, 4, (1, 1))
        self.pfafter = True
        self.kvrot = 0; self.nokv = False; self.trace = False; self.abench = False; self.LA = 4; self.sched = 0; self.drop = ''; self.rowsum = 'mfma'; self.D = 4; self.wspace = False
        self.ost = (18, 20, 24); self.wpf = (28, 30, 31); self.ost1 = (2, 3, 5); self.polla = (1, 2); self.pollb = (8, 9)
        self.tr = ([('k',0),('k',1),('k',2)], [('r',0)], [('r',1),('r',2)], [('k',3)])
        self.__dict__.update(kw)

def gen(cfg):
    a = Asm()
    nst = [0]
    def stamp():
        if cfg.prof:
            r = sSTAMP + 2 * nst[0]; nst[0] += 1
            assert r + 1 <= 101
            if r == sSTAMP: return
            a(f"{'s_memtime' if cfg.prof == 'cyc' else 's_memrealtime'} s[{r}:{r+1}]")
            a("s_waitcnt lgkmcnt(0)")
            a.ds = []
    def cstamp(sreg, val):
        if cfg.prof:
            keep = list(a.ds)
            lab = a.newlabel("st"); a(f"s_cmp_lg_u32 s{sreg}, {val}"); a(f"s_cbranch_scc1 {lab}"); stamp(); a.label(lab)
            a.ds = keep

    if cfg.prof: a(f"{'s_memtime' if cfg.prof == 'cyc' else 's_memrealtime'} s[{sSTAMP}:{sSTAMP+1}]")
    if cfg.trace: a("s_memrealtime s[92:93]")
    a("s_cmp_ge_u32 s2, 256"); a("s_cbranch_scc1 L_end")
    a(f"s_and_b32 s{sXCD}, s2, 7")
    a(f"s_lshr_b32 s{sBR}, s{sXCD}, 2")
    a(f"s_mul_i32 s3, s{sBR}, 40")
    a("s_add_u32 s4, s0, s3"); a("s_addc_u32 s5, s1, 0")
    a(f"s_load_dwordx2 s[{S_X}:{S_X+1}], s[4:5], 0")
    a(f"s_load_dwordx2 s[{S_WQ}:{S_WQ+1}], s[4:5], 24")
    a(f"s_load_dwordx2 s[{S_K}:{S_K+1}], s[4:5], 8")
    a(f"s_load_dwordx2 s[{S_V}:{S_V+1}], s[4:5], 16")
    a(f"s_load_dwordx2 s[{S_WO}:{S_WO+1}], s[4:5], 32")
    a(f"s_load_dwordx2 s[{S_OUT}:{S_OUT+1}], s[0:1], 80")
    a(f"s_load_dwordx2 s[{S_DBG}:{S_DBG+1}], s[0:1], 88")
    a(f"s_load_dwordx2 s[{S_WS}:{S_WS+1}], s[0:1], 96")
    a("v_lshrrev_b32 v1, 6, v0"); a("v_and_b32 v0, 63, v0"); a(f"v_readfirstlane_b32 s{sWAVE}, v1")
    a(f"s_lshr_b32 s{sJ}, s2, 3")
    a(f"s_and_b32 s{sG}, s{sXCD}, 3")
    a(f"s_lshr_b32 s{sB}, s{sJ}, 2")
    a(f"s_and_b32 s{sJJ}, s{sJ}, 3")
    for srd, n in ((S_X, 2*M), (S_K, 32*M), (S_V, 32*M), (S_WQ, 8*M), (S_WO, 8*M), (S_OUT, 4*M), (S_WS, 64*M), (S_DBG, 256)):
        a(f"s_mov_b32 s{srd+2}, {n}"); a(f"s_mov_b32 s{srd+3}, 0x00020000")
    a(f"s_lshl_b32 s{sH0}, s{sG}, 3"); a(f"s_lshl_b32 s3, s{sJJ}, 1"); a(f"s_add_u32 s{sH0}, s{sH0}, s3")
    a(f"s_add_u32 s{sROT}, s{sJJ}, s{sB}")
    a(f"s_and_b32 s{sCT}, s{sROT}, 3")
    a(f"s_lshl_b32 s3, s{sBR}, 3"); a(f"s_add_u32 s{sT0}, s3, s{sB}")
    a(f"s_lshl_b32 s{sGRP1}, s{sT0}, 4")
    a(f"s_lshl_b32 s3, s{sG}, 2"); a(f"s_add_u32 s3, s3, s{sCT}"); a(f"s_add_u32 s{sGRP2}, s3, s{sGRP1}")
    a(f"s_lshl_b32 s{sOB}, s{sT0}, 20")
    a(f"s_cmp_lt_u32 s{sWAVE}, 4"); a("s_cbranch_scc1 L_compute")

    if cfg.abench: a("s_endpgm")
    if cfg.yprio: a(f"s_setprio {cfg.yprio}")
    a(f"s_sub_u32 s{sWAVE}, s{sWAVE}, 4")
    VX, VW, VK, VV, VWO, VL, VP, VQ, VF = 4, 8, 12, 16, 20, 24, 25, 26, 28
    OREG = 32
    RB = 96 if len(cfg.regT) <= 9 else 32
    assert RB == 96 or cfg.regT[1] <= 8
    assert RB + 16 * len(cfg.regT) <= (252 if cfg.trace else 256)
    a("v_lshrrev_b32 v1, 3, v0"); a("v_and_b32 v2, 7, v0"); a("v_lshrrev_b32 v3, 4, v0")
    a(f"s_lshl_b32 s3, s{sWAVE}, 16")
    for q in range(4):
        a(f"v_add_u32 v30, {4*q}, v3"); a("v_and_b32 v30, 7, v30"); a("v_xor_b32 v30, v30, v2"); a("v_lshlrev_b32 v30, 4, v30")
        a(f"v_add_u32 v31, {8*q}, v1"); a("v_lshlrev_b32 v31, 11, v31"); a("v_add3_u32 v30, v30, v31, s3")
        a(f"v_subrev_u32 v{VX+q}, {q*1024}, v30")
    a("v_and_b32 v1, 15, v0"); a("v_lshlrev_b32 v30, 2, v3"); a("v_xor_b32 v2, v1, v30")
    a(f"s_lshl_b32 s3, s{sWAVE}, 17")
    for q in range(4):
        a(f"v_xor_b32 v30, {((q>>1)&1)<<1}, v2"); a("v_lshlrev_b32 v30, 4, v30")
        a(f"v_add_u32 v31, {4*q}, v3"); a("v_lshlrev_b32 v31, 13, v31"); a("v_add3_u32 v30, v30, v31, s3")
        a(f"v_subrev_u32 v{VW+q}, {q*1024}, v30")
    a(f"s_lshl_b32 s{sXB}, s{sB}, 18")
    a(f"s_lshl_b32 s{sWB}, s{sH0}, 8")
    a(f"s_lshl_b32 s{sT5}, s{sWAVE}, 12")
    a("s_waitcnt lgkmcnt(0)")
    ntr = [0]
    def ytrace():
        if cfg.trace:
            i = ntr[0]; ntr[0] += 1
            a("s_memrealtime s[90:91]"); a("s_waitcnt lgkmcnt(0)")
            a("s_sub_u32 s90, s90, s92"); a(f"v_writelane_b32 v{252 + i // 64}, s90, {i % 64}")
    def ybar():
        ytrace(); a("s_barrier"); ytrace()
    def tile(lds, vbase, vstep, srd, so, fl, tag):
        a(f"s_add_u32 m0, s{sT5}, {lds}")
        a("s_nop 0")
        for q in range(4):
            a.vmop(f"buffer_load_dwordx4 v{vbase+int(vstep*q)}, s[{srd}:{srd+3}], s{so} offen offset:{q*1024} {fl} lds", tag)
    def q_issue(s):
        rot = cfg.rot
        if rot:
            a(f"s_add_u32 s3, s{sROT}, {s}"); a(f"s_and_b32 s3, s3, {rot-1}")
            if s & ~(rot-1): a(f"s_or_b32 s3, s3, {s & ~(rot-1)}")
        else:
            a(f"s_mov_b32 s3, {s}")
        a(f"s_lshl_b32 s{sT0}, s3, 7"); a(f"s_add_u32 s{sT0}, s{sT0}, s{sXB}")
        a(f"s_lshl_b32 s{sT1}, s3, 19"); a(f"s_add_u32 s{sT1}, s{sT1}, s{sWB}"); a(f"s_add_u32 s{sT2}, s{sT1}, 256")
        base = SET0 + (s % 3) * 49152
        tile(base, VX, 1, S_X, sT0, cfg.fx, ('Q', s)); tile(base+16384, VW, 1, S_WQ, sT1, cfg.fw, ('Q', s)); tile(base+32768, VW, 1, S_WQ, sT2, cfg.fw, ('Q', s))
    q_issue(0)
    a(f"s_lshl_b32 s{sT4}, s{sWAVE}, 15")
    a("v_bfe_u32 v30, v0, 2, 2"); a("v_lshlrev_b32 v30, 8, v30"); a("v_lshl_add_u32 v30, v3, 6, v30")
    a("v_and_b32 v31, 3, v0"); a("v_lshl_add_u32 v30, v31, 4, v30"); a(f"v_add_u32 v{VV}, s{sT5}, v30")
    a(f"v_xor_b32 v{VV+1}, 32, v{VV}")
    for h in range(2):
        a(f"s_lshl_b32 s3, s{sWAVE}, 1"); a(f"s_sub_u32 s3, {8-h}, s3"); a("s_and_b32 s3, s3, 3"); a("s_lshl_b32 s3, s3, 4")
        a(f"v_xor_b32 v{VK+h}, s3, v{VV}")
    for q in range(4):
        a(f"v_xor_b32 v30, {((q>>1)&1)<<1}, v2"); a("v_lshlrev_b32 v30, 4, v30")
        a(f"v_add_u32 v31, {4*q}, v3"); a("v_lshl_add_u32 v30, v31, 11, v30")
        a(f"v_add_u32 v30, s{sT4}, v30")
        a(f"v_subrev_u32 v{VWO+q}, {q*1024}, v30")
    a("v_lshlrev_b32 v30, 4, v0"); a(f"v_add_u32 v{VL}, s{sT5}, v30")
    a(f"v_lshlrev_b32 v{VQ+1}, 2, v1"); a(f"v_and_b32 v{VQ}, 12, v{VQ+1}")
    a(f"v_lshlrev_b32 v{VF}, 10, v0"); a(f"v_mov_b32 v{VF+1}, 1")
    a(f"s_lshl_b32 s3, s{sGRP2}, 10"); a(f"s_add_u32 s{sFL}, s3, {FLAG}")
    a(f"s_lshl_b32 s3, s{sB}, 5"); a(f"s_add_u32 s3, s3, s{sH0}"); a(f"s_lshl_b32 s{sKV}, s3, 17")
    a(f"s_lshl_b32 s3, s{sH0}, 15"); a(f"s_add_u32 s{sOST}, s{sOB}, s3")
    sKR, sKV1 = 88, 89
    if cfg.kvrot == 0: a(f"s_mov_b32 s{sKR}, 0")
    elif cfg.kvrot == 1: a(f"s_add_u32 s3, s{sJ}, s{sXCD}"); a(f"s_lshl_b32 s{sKR}, s3, 14")
    elif cfg.kvrot == 2: a(f"s_lshl_b32 s{sKR}, s{sJ}, 14")
    elif cfg.kvrot == 3: a(f"s_lshl_b32 s{sKR}, s{sXCD}, 14")
    elif cfg.kvrot == 4: a(f"s_add_u32 s3, s{sB}, s{sXCD}"); a(f"s_lshl_b32 s{sKR}, s3, 14")
    a(f"s_add_u32 s{sKV1}, s{sKV}, 131072")
    def kvaddr(dst, T):
        a(f"s_add_u32 s3, s{sKR}, {(T % 8)*16384}"); a("s_and_b32 s3, s3, 0x1ffff"); a(f"s_add_u32 s{dst}, s3, s{sKV if T < 8 else sKV1}")
    sOO, sWW = 80, 84
    for i in range(4):
        a(f"s_add_u32 s3, s{sJJ}, {i}"); a("s_and_b32 s3, s3, 3"); a(f"s_lshl_b32 s{sT3}, s{sG}, 2"); a(f"s_add_u32 s3, s3, s{sT3}")
        a(f"s_lshl_b32 s{sT3}, s3, 16"); a(f"s_add_u32 s{sOO+i}, s{sT3}, s{sOB}")
        a(f"s_lshl_b32 s{sT3}, s3, 19"); a(f"s_lshl_b32 s3, s{sCT}, 9"); a(f"s_add_u32 s{sWW+i}, s{sT3}, s3")

    def regload(i, track=True):
        T = cfg.regT[i]
        kvaddr(sT3, T)
        for q in range(4):
            s = f"buffer_load_dwordx4 {vr(RB+16*i+4*q,4)}, v{VV+q//2}, s[{S_V}:{S_V+3}], s{sT3} offen offset:{q*1024} {cfg.fkv}"
            if cfg.nokv: continue
            if track: a.vmop(s, ('R', i))
            else: a(s)
    nreg = len(cfg.regT)
    plan = {}
    start, mod, sizes = cfg.pf
    i0 = 0
    for k, sz in enumerate(sizes):
        for ph in range(mod):
            s = start + mod*k + ph
            assert 1 <= s <= 15
            if sz: plan[s] = (list(range(i0, i0+sz)), ph if mod > 1 else None)
        i0 += sz
    assert i0 <= nreg
    late = [i for i in range(nreg) if not any(i in v[0] for v in plan.values())]
    def pf_block(s, waittag):
        if s not in plan:
            a.vmwait(waittag); return
        lst, ph = plan[s]
        if ph is None:
            for i in lst: regload(i)
            a.vmwait(waittag); return
        skip = a.newlabel("nopf"); done = a.newlabel("pfd")
        a(f"s_and_b32 s3, s{sJ}, {mod-1}"); a(f"s_cmp_lg_u32 s3, {ph}"); a(f"s_cbranch_scc1 {skip}")
        keep = list(a.vm)
        for i in lst: regload(i)
        a.vmwait(waittag)
        a(f"s_branch {done}")
        a.label(skip)
        a.vm = keep
        a.vmwait(waittag)
        a.label(done)
    for s in range(1, 16):
        q_issue(s)
        pf_block(s, ('Q', s-1))
        ybar()

    def poll_issue(kind, track=True):
        if kind == 'ready':
            s = f"buffer_load_dword v{VP}, v{VQ}, s[{S_DBG}:{S_DBG+3}], s{sGRP1} offen sc1"
        else:
            s = f"buffer_load_dword v{VP}, v{VQ+1}, s[{S_WS}:{S_WS+3}], s{sFL} offen offset:{kind} sc1"
        if track: a.vmop(s, 'poll')
        else: a(s)
    def poll_check(kind):
        done = a.newlabel("pd"); spin = a.newlabel("ps")
        a.vmwait('poll')
        a(f"s_mov_b32 s{sSPIN}, 0")
        a.label(spin)
        a(f"v_cmp_ne_u32 vcc, 1, v{VP}")
        a(f"s_cbranch_vccz {done}")
        a("s_sleep 4")
        poll_issue(kind, track=False)
        a(f"s_add_u32 s{sSPIN}, s{sSPIN}, 1")
        a("s_waitcnt vmcnt(0)")
        a(f"s_cmp_lt_u32 s{sSPIN}, 0x40000"); a(f"s_cbranch_scc1 {spin}")
        a.label(done)
    stream = [('K', 0)]
    for T in range(1, 17): stream += [('K', T), ('V', T-1)]
    issued = set()
    def kv_issue(n):
        if n >= len(stream) or n in issued: return
        issued.add(n)
        kind, T = stream[n]
        if T == 16: return
        lds = RING + (2*(T % 3) + (kind == 'V')) * 16384
        if kind == 'V' and T in cfg.regT:
            i = cfg.regT.index(T)
            a.vmwait(('R', i))
            a(f"v_add_u32 v30, {lds}, v{VL}")
            for q in range(4):
                a.dsop(f"ds_write_b128 v30, {vr(RB+16*i+4*q,4)} offset:{q*1024}", 'w')
                if cfg.wspace: a.dswait_all()
        elif not cfg.nokv:
            kvaddr(sT0, T)
            if kind == 'K': tile(lds, VK, 0.5, S_K, sT0, cfg.fkv, ('KV', n))
            else: tile(lds, VV, 0.5, S_V, sT0, cfg.fkv, ('KV', n))
    def bar():
        a.dswait_all(); ybar()
    def oread(item, lo, hi):
        for h, base in enumerate((lo, hi)):
            a(f"v_add_u32 v{30+h}, {base}, v{VL}")
            for q in range(4):
                a.dsop(f"ds_read_b128 {vr(OREG+32*item+16*h+4*q,4)}, v{30+h} offset:{q*1024}", 'o')
    def ostore(item, h):
        a.dswait('o')
        a(f"s_add_u32 s{sT3}, s{sOST}, {item*32768 + h*16384}")
        for q in range(4):
            a.vmop(f"buffer_store_dwordx4 {vr(OREG+32*item+16*h+4*q,4)}, v{VL}, s[{S_WS}:{S_WS+3}], s{sT3} offen offset:{q*1024} {cfg.fo}", ('O', item))
    def osignal(item):
        a.vmwait(('O', item))
        a(f"s_and_b32 s{sT3}, s{sGRP2}, -4"); a(f"s_lshl_b32 s{sT3}, s{sT3}, 10")
        a(f"s_lshl_b32 s3, s{sCT}, 4"); a(f"s_add_u32 s{sT3}, s{sT3}, s3")
        a(f"s_lshl_b32 s3, s{sWAVE}, 2"); a(f"s_add_u32 s{sT3}, s{sT3}, s3"); a(f"s_add_u32 s{sT3}, s{sT3}, {FLAG + item*128}")
        a("s_mov_b64 exec, 15")
        a.vmop(f"buffer_store_dword v{VF+1}, v{VF}, s[{S_WS}:{S_WS+3}], s{sT3} offen sc1", 'sig')
        a("s_mov_b64 exec, -1")
    OSET = [SET0, SET0 + 98304, SET0 + 49152]
    def ostage(k):
        if k < 4: return 0, (1 - k // 2) * 2 + (k & 1)
        return 1 + ((k - 4) // 2) % 3, ((k - 4) // 6) * 2 + (k & 1)
    def o_tile(k, which):
        i, sub = ostage(k); base = OSET[k % 3]
        if which == 0:
            if k < 2: return
            if k < 4:
                a(f"v_add_u32 v30, {base}, v{VL}")
                for q in range(4):
                    a.dsop(f"ds_write_b128 v30, {vr(OREG+16*(k&1)+4*q,4)} offset:{q*1024}", 'w')
                return
            a(f"s_add_u32 s{sT0}, s{sOO+i}, {sub*16384}"); tile(base, VL, 0, S_WS, sT0, 'sc1', ('G', k))
        else:
            a(f"s_add_u32 s{sT0}, s{sWW+i}, {sub*131072 + (which-1)*256}"); tile(base + which*16384, VWO, 1, S_WO, sT0, cfg.fwo, ('G', k))

    def acts(lst):
        for kind, i in lst:
            if kind == 'k': kv_issue(i)
            elif i < len(late): regload(late[i]); loaded.add(late[i])
    loaded = set()
    poll_issue('ready')
    acts(cfg.tr[0])
    a.vmwait(('Q', 15))
    poll_check('ready')
    bar()
    acts(cfg.tr[1])
    bar()
    acts(cfg.tr[2])
    bar()
    acts(cfg.tr[3])
    assert loaded == set(late)
    def isreg(n): return n < len(stream) and stream[n][0] == 'V' and stream[n][1] in cfg.regT
    for n in range(33):
        assert n in issued
        a.vmwait(('KV', n))
        bar()
        if not isreg(n+3) or n % 2 == 0 or n == 1: kv_issue(n+3)
        if n >= 2 and n % 2 == 0 and isreg(n+4): kv_issue(n+4)
        if cfg.D == 4 and n >= 2 and n != 17: kv_issue(n+4)
        if n == 18: oread(0, 0, 16384)
        if n == cfg.ost[0]: ostore(0, 0)
        if n == cfg.ost[1]: ostore(0, 1)
        if n == cfg.ost[2]: osignal(0)
        if n == cfg.wpf[0]: o_tile(0, 1)
        if n == cfg.wpf[1]: o_tile(0, 2)
        if n == cfg.wpf[2]: o_tile(1, 1)
    assert len(issued) == len(stream)
    for k in range(1, 16):
        if k == 2: oread(1, OSET[0], OSET[1])
        if k == cfg.polla[0]: poll_issue(0)
        if k == cfg.pollb[0]: poll_issue(128)
        for which in (1, 2, 0):
            if not (k == 1 and which == 1): o_tile(k, which)
        if k == cfg.ost1[0]: ostore(1, 0)
        if k == cfg.ost1[1]: ostore(1, 1)
        a.vmwait(('G', k-1))
        if k == 1 and cfg.ost[2] > 32: osignal(0)
        if k == cfg.ost1[2]: osignal(1)
        if k == cfg.polla[1]: poll_check(0)
        if k == cfg.pollb[1]: poll_check(128)
        bar()
    a.vmwait(('G', 15))
    bar()
    bar()
    if cfg.trace:
        a(f"s_cmp_lg_u32 s{sWAVE}, 0"); a("s_cbranch_scc1 L_end")
        a("s_lshl_b32 s3, s2, 10"); a(f"s_add_u32 s3, s3, {50*M}"); a("v_lshlrev_b32 v1, 2, v0")
        for i in range(3): a(f"buffer_store_dword v{252+i}, v1, s[{S_WS}:{S_WS+3}], s3 offen offset:{256*i}")
    a.label("L_end")
    a("s_endpgm")

    a.label("L_compute")
    a.ds = []; a.vm = []
    if cfg.prio: a(f"s_setprio {cfg.prio}")
    stamp()
    a(f"s_and_b32 s{sRH}, s{sWAVE}, 1"); a(f"s_lshr_b32 s{sHH}, s{sWAVE}, 1")
    vTRB, vNAT, vLIN = 1, 2, 3
    AB, AA, FB, FA, ACC = 4, 6, 16, 48, 128
    vt0, vt1 = 14, 15
    a("v_lshrrev_b32 v16, 4, v0")
    a("v_and_b32 v17, 15, v0")
    a("v_bfe_u32 v18, v0, 2, 2")
    a("v_lshlrev_b32 v19, 3, v16"); a("v_add_u32 v19, v19, v18"); a("v_lshlrev_b32 v19, 8, v19")
    a("v_lshl_add_u32 v19, v18, 6, v19")
    a("v_and_b32 v20, 1, v16"); a("v_lshl_add_u32 v19, v20, 5, v19")
    a("v_and_b32 v21, 3, v0"); a(f"v_lshl_add_u32 v{vTRB}, v21, 3, v19")
    a("v_lshrrev_b32 v21, 1, v16"); a("v_lshl_add_u32 v21, v20, 1, v21")
    a("v_lshl_add_u32 v21, v21, 4, v17"); a(f"v_lshlrev_b32 v{vNAT}, 4, v21")
    a(f"v_lshlrev_b32 v{vLIN}, 4, v0")
    a("v_lshrrev_b32 v19, 1, v17"); a("v_xor_b32 v19, v19, v16"); a("v_lshlrev_b32 v19, 4, v19")
    a("v_lshl_add_u32 v19, v17, 7, v19")
    a(f"s_lshl_b32 s3, s{sRH}, 13"); a(f"s_add_u32 s3, s3, {SET0}"); a(f"v_add_u32 v{AB}, s3, v19")
    a(f"v_xor_b32 v{AB+1}, 64, v{AB}")
    a(f"s_lshl_b32 s3, s{sHH}, 14"); a(f"s_add_u32 s3, s3, {SET0+16384}"); a(f"v_add_u32 v{AA}, s3, v{vTRB}")
    for mb in range(1, 8): a(f"v_xor_b32 v{AA+mb}, {mb*32}, v{AA}")
    a(f"s_mov_b32 s{sPH}, 0"); a(f"s_mov_b32 s{sTRIG}, -1")
    a(f"s_mov_b32 s{sSET}, 0"); a(f"s_mov_b32 s{sD1}, 49152"); a(f"s_mov_b32 s{sD2}, -98304")
    a("s_waitcnt lgkmcnt(0)")
    if cfg.abench: a("s_branch L_attn")
    a(f"s_and_b32 s3, s{sB}, 3"); a("s_mul_i32 s3, s3, 5"); a(f"s_add_u32 s3, s3, s{sGRP1}")
    a(f"s_cmp_lg_u32 s3, s{sGRP2}"); a("s_cbranch_scc1 L_gemm")
    for r in range(4): a(f"v_mov_b32 v{16+r}, 0")
    a(f"s_lshl_b32 s3, s{sGRP1}, 10"); a(f"s_lshl_b32 s{sT0}, s{sWAVE}, 12"); a(f"s_add_u32 s3, s3, s{sT0}"); a(f"s_add_u32 s3, s3, {FLAG}")
    for q in range(4):
        a(f"buffer_store_dwordx4 v[16:19], v{vLIN}, s[{S_WS}:{S_WS+3}], s3 offen offset:{q*1024} sc1")
    a(f"s_mov_b32 s{sTRIG}, {cfg.rtrig}")

    a.label("L_gemm")
    for r in range(0, 128, 2): a(f"v_mov_b64 {vr(ACC+r,2)}, 0")
    a(f"s_mov_b32 s{sCNT}, 0")
    addr_regs = list(range(AB, AB+2)) + list(range(AA, AA+8))
    def g_reads(ks, st):
        def rb(nb): return lambda: a.dsop(f"ds_read_b128 {vr(FB+16*st+4*nb,4)}, v{AB+ks} offset:{nb*2048}", ('B', st, nb))
        def ra(mb, t): return lambda: a.dsop(f"ds_read_b64_tr_b16 {vr(FA+32*st+4*mb+2*t,2)}, v{AA+mb} offset:{(32*ks+4*t)*256}", ('A', st, mb))
        R = [rb(0), ra(0,0), ra(0,1), rb(1), rb(2), rb(3)]
        for mb in range(1, 8): R += [ra(mb,0), ra(mb,1)]
        return R
    def g_mfmas(st):
        R = []
        for mb in range(8):
            for nb in range(4):
                def f(mb=mb, nb=nb):
                    a.dswait(('A', st, mb), ('B', st, nb))
                    c = ACC + (mb*4+nb)*4
                    a(f"v_mfma_f32_16x16x32_bf16 {vr(c,4)}, {vr(FA+32*st+4*mb,4)}, {vr(FB+16*st+4*nb,4)}, {vr(c,4)}")
                R.append(f)
        return R
    a("s_barrier")
    cstamp(sPH, 0)
    rd = g_reads(0, 0)
    for f in rd[:14]: f()
    a.dswait(('A', 0, 4))
    for f in rd[14:]: f()
    entry_ds = list(a.ds)
    a(".p2align 3")
    a.label("L_gloop")
    mm = g_mfmas(0)
    fill = [lambda: a(f"s_add_u32 s{sSET}, s{sSET}, 1"), lambda: a(f"s_cmp_eq_u32 s{sSET}, 3"),
            lambda: a(f"s_cselect_b32 s{sDELTA}, s{sD2}, s{sD1}"), lambda: a(f"s_cselect_b32 s{sSET}, 0, s{sSET}"),
            lambda: a(f"s_add_u32 s{sCNT}, s{sCNT}, 1"), lambda: a.dswait_all()] + g_reads(1, 1)
    interleave(a, mm, fill, [1]*26 + [0]*6)
    mm = g_mfmas(1)
    fill = [(lambda r=r: a(f"v_add_u32 v{r}, s{sDELTA}, v{r}")) for r in addr_regs]
    a.dswait(('A', 1, 4))
    interleave(a, mm[:5], fill, [2]*5)
    a.dswait_all()
    mm[5]()
    a(f"s_cmp_eq_u32 s{sCNT}, s{sTRIG}"); a("s_cbranch_scc1 L_gtrig")
    a.label("L_gtrig_ret")
    a("s_barrier")
    rd = g_reads(0, 0)
    fill = rd + [lambda: a.dswait(('A', 0, 4)), lambda: a(f"s_cmp_lg_u32 s{sCNT}, 16")]
    interleave(a, mm[6:], fill, [1]*20 + [0]*4 + [1, 1])
    assert a.ds == entry_ds, (a.ds, entry_ds)
    a("s_cbranch_scc1 L_gloop")
    a.dswait_all()
    a(f"s_cmp_lg_u32 s{sPH}, 0"); a("s_cbranch_scc1 L_oepi")

    def pack_pair(items, scale):
        for c0, c1, t, sc, out in items:
            if scale:
                for c in (c0, c1):
                    for h in (0, 2): a(f"v_pk_mul_f32 {vr(c+h,2)}, {vr(c+h,2)}, {sc}")
        for c0, c1, t, sc, out in items:
            for aa, c in enumerate((c0, c1)):
                a(f"v_cvt_pk_bf16_f32 v{t+2*aa}, v{c}, v{c+1}"); a(f"v_cvt_pk_bf16_f32 v{t+2*aa+1}, v{c+2}, v{c+3}")
        for c0, c1, t, sc, out in items:
            a(f"v_permlane16_swap_b32 v{t}, v{t+2}"); a(f"v_permlane16_swap_b32 v{t+1}, v{t+3}")
        for c0, c1, t, sc, out in items: out()

    stamp()
    cq = f32(math.log2(math.e) / math.sqrt(128.0))
    a(f"s_mov_b32 s{sC2}, {cq}"); a(f"s_mov_b32 s{sC2+1}, {cq}")
    a(f"s_lshl_b32 s{sT0}, s{sHH}, 15"); a(f"s_lshl_b32 s{sT1}, s{sRH}, 14"); a(f"s_add_u32 s{sT0}, s{sT0}, s{sT1}")
    a(f"v_add_u32 v{vt0}, s{sT0}, v{vNAT}")
    k = 0
    for p in range(4):
        for nb2 in range(2):
            items = []
            for nb in (2*nb2, 2*nb2+1):
                t = 16 + 4 * (k % 8); k += 1
                items.append((ACC + ((2*p)*4+nb)*4, ACC + ((2*p+1)*4+nb)*4, t, f"s[{sC2}:{sC2+1}]",
                              (lambda t=t, nb=nb, p=p: a(f"ds_write_b128 v{vt0}, {vr(t,4)} offset:{nb*4096 + p*1024}"))))
            pack_pair(items, True)

    KA, VA, vQA, vOA, vOR, vMX, vTM = 4, 5, 7, 8, 10, 11, 13
    Q, FR, SB, P, O, NEG, vL, ONES, TMP, vOT, vRC = 16, 48, 80, 112, 128, 192, 200, 208, 212, 220, 236
    msum = cfg.rowsum == 'mfma'
    a.label("L_attn")
    a("v_lshrrev_b32 v48, 4, v0"); a("v_bfe_u32 v49, v0, 2, 2"); a("v_and_b32 v50, 3, v0")
    a("v_sub_u32 v51, 0, v49"); a("v_and_b32 v51, 3, v51"); a("v_xor_b32 v51, v51, v48"); a("v_lshlrev_b32 v51, 4, v51")
    a("v_lshl_add_u32 v51, v49, 11, v51"); a("v_lshl_add_u32 v51, v50, 6, v51"); a(f"v_add_u32 v{KA}, {RING}, v51")
    a("v_lshlrev_b32 v51, 11, v48"); a("v_lshl_add_u32 v51, v49, 6, v51"); a("v_lshl_add_u32 v51, v50, 3, v51")
    a("v_and_b32 v48, 1, v48"); a("v_lshl_add_u32 v51, v48, 5, v51"); a(f"v_add_u32 v{VA}, {RING+16384}, v51"); a(f"v_xor_b32 v{VA+1}, 32, v{VA}")
    a(f"s_lshl_b32 s3, s{sWAVE}, 13"); a(f"v_add_u32 v{vQA}, s3, v{vLIN}")
    a(f"s_lshl_b32 s3, s{sWAVE}, 12"); a(f"v_add_u32 v{vOA}, s3, v{vNAT}"); a(f"v_add_u32 v{vOA+1}, {SET0+98304}, v{vOA}")
    if msum:
        for r in range(4): a(f"v_mov_b32 v{ONES+r}, 0x3f803f80")
    a(f"s_mov_b32 s{sCNT}, 0")
    a(f"s_mov_b32 s{sSET}, 0"); a(f"s_mov_b32 s{sD1}, 32768"); a(f"s_mov_b32 s{sD2}, -65536")
    a(f"s_mov_b32 s{sT4}, 0x40004000")
    a("s_waitcnt lgkmcnt(0)")
    a("s_barrier")

    def qreads(item):
        for nb in range(2):
            for ks in range(4):
                a.dsop(f"ds_read_b128 {vr(Q+16*nb+4*ks,4)}, v{vQA} offset:{item*32768+nb*4096+ks*1024}", 'q')
    def kreads(uh):
        return [[lambda i=i: a.dsop(f"ds_read_b128 {vr(FR+4*i,4)}, v{KA} offset:{uh*8192+(i%2)*1024+(i//2)*256}", ('F', i))] for i in range(8)]
    def vreads(uh):
        return [[(lambda mb=mb, t=t: a.dsop(f"ds_read_b64_tr_b16 {vr(FR+4*mb+2*t,2)}, v{VA+mb%2} offset:{uh*8192+t*1024+(mb//2)*256}", ('F', mb))) for t in range(2)]
                for mb in range(8)]
    def sreg(buf, aa, nb): return SB + 16*buf + 4*(2*aa+nb)
    def fwait(i):
        if i % 2 == 0: a.dswait(('F', i), ('F', i+1))
        else: a.dswait(('F', i))
    def qk_list(buf, first=False):
        R = []
        for i in range(8):
            for nb in range(2):
                def f(i=i, nb=nb):
                    ks, aa = i // 2, i % 2
                    if nb == 0: fwait(i)
                    d = sreg(buf, aa, nb)
                    c = ("0" if first else vr(NEG+4*nb, 4)) if ks == 0 else vr(d, 4)
                    a(f"v_mfma_f32_16x16x32_bf16 {vr(d,4)}, {vr(FR+4*i,4)}, {vr(Q+16*nb+4*ks,4)}, {c}")
                R.append(f)
        return R
    def pv_list(buf):
        R = []
        if msum:
            for nb in range(2):
                R.append(lambda nb=nb: a(f"v_mfma_f32_16x16x32_bf16 {vr(vL+4*nb,4)}, {vr(ONES,4)}, {vr(P+8*buf+4*nb,4)}, {vr(vL+4*nb,4)}"))
        for mb in range(8):
            for nb in range(2):
                def f(mb=mb, nb=nb):
                    if nb == 0: fwait(mb)
                    d = O + (mb*2+nb)*4
                    a(f"v_mfma_f32_16x16x32_bf16 {vr(d,4)}, {vr(FR+4*mb,4)}, {vr(P+8*buf+4*nb,4)}, {vr(d,4)}")
                R.append(f)
        return R
    def V(cost, text, nb=0): return (cost, (lambda: a(text)), nb)
    def ex_ops(buf, chk=True, freshl=False):
        p = P + 8*buf
        E = []; C = []
        for n in range(8):
            nb, aa, h = n // 4, (n // 2) % 2, n % 2
            s0 = sreg(buf, aa, nb) + 2*h; t = TMP + 2 * (n % 4)
            E.append([V(8, f"v_exp_f32 v{t}, v{s0}"), V(8, f"v_exp_f32 v{t+1}, v{s0+1}")])
            l = vL + 2*buf + nb; lp = vL + 2*(1-buf) + nb
            if msum: adds = []
            elif freshl and n % 4 == 0: adds = [V(4, f"v_add_f32 v{l}, v{t}, v{t+1}")]
            else: adds = [V(4, f"v_add_f32 v{l}, v{l if n % 4 else lp}, v{t}"), V(4, f"v_add_f32 v{l}, v{l}, v{t+1}")]
            C.append([V(4, f"v_cvt_pk_bf16_f32 v{p+n}, v{t}, v{t+1}")] + adds)
        out = list(E[0])
        for i in range(1, 8):
            out += [E[i][0]] + C[i-1][:2] + [E[i][1]] + C[i-1][2:]
            if chk and i == 4: out.append(V(4, f"v_or3_b32 v{vOR}, v{p}, v{p+1}, v{p+2}"))
            if chk and i == 6: out.append(V(4, f"v_or3_b32 v{vOR}, v{vOR}, v{p+3}, v{p+4}"))
        out.append(V(4, f"v_or3_b32 v{vOR}, v{vOR}, v{p+5}, v{p+6}") if chk else V(4, "s_nop 0"))
        out += C[7][:1]
        if chk: out.append(V(4, f"v_bitop3_b32 v{vOR}, v{vOR}, v{p+7}, s{sT4} bitop3:0xa8"))
        out += C[7][1:]
        if chk: out.append(V(4, f"v_cmp_ne_u32 vcc, 0, v{vOR}"))
        return out
    def xlane2(op, r, t):
        R = []
        for sw in ("v_permlane16_swap_b32", "v_permlane32_swap_b32"):
            R += [V(4, f"v_mov_b32 v{t+nb}, v{r+nb}") for nb in range(2)] + [V(4, "s_nop 0")]
            R += [V(4, f"{sw} v{r+nb}, v{t+nb}") for nb in range(2)] + [V(4, "s_nop 0")]
            R += [V(4, f"{op} v{r+nb}, v{r+nb}, v{t+nb}") for nb in range(2)]
        return R
    def max_ops(buf, nbf=0):
        R = []
        for nb in range(2):
            s0, s1 = sreg(buf, 0, nb), sreg(buf, 1, nb)
            R += [V(4, f"v_max3_f32 v{vMX+nb}, v{s0}, v{s0+1}, v{s0+2}", nbf if nb == 0 else 0), V(4, f"v_max3_f32 v{vMX+nb}, v{vMX+nb}, v{s0+3}, v{s1}"),
                  V(4, f"v_max3_f32 v{vMX+nb}, v{vMX+nb}, v{s1+1}, v{s1+2}"), V(4, f"v_max_f32 v{vMX+nb}, v{vMX+nb}, v{s1+3}")]
        R += xlane2("v_max_f32", vMX, vTM)
        R += [V(4, f"v_add_f32 v{vMX+nb}, {f32(BIAS)}, v{vMX+nb}") for nb in range(2)]
        return R
    def init_ops(buf, nbf=0):
        R = max_ops(buf, nbf) + [V(4, f"v_sub_f32 v{NEG+4*nb+r}, 0, v{vMX+nb}") for nb in range(2) for r in range(4)]
        return R + [V(4, f"v_sub_f32 v{sreg(buf,aa,nb)+r}, v{sreg(buf,aa,nb)+r}, v{vMX+nb}") for nb in range(2) for aa in range(2) for r in range(4)]
    def rcp_ops(nbf=0):
        if msum:
            R = [V(8, f"v_rcp_f32 v{vRC+2*nb}, v{vL+4*nb}", nbf if nb == 0 else 0) for nb in range(2)]
        else:
            R = xlane2("v_add_f32", vL+2, vTM) + [V(8, f"v_rcp_f32 v{vRC+2*nb}, v{vL+2+nb}") for nb in range(2)]
        return R + [V(4, "s_nop 0")] + [V(4, f"v_mov_b32 v{vRC+2*nb+1}, v{vRC+2*nb}") for nb in range(2)]
    def epi_ops(item, zero, pk, nbf=0):
        R = []
        for p in range(4):
            for nb in range(2):
                for aa in range(2):
                    c = O + ((2*p+aa)*2+nb)*4
                    if pk:
                        for e in (0, 2): R.append(V(4, f"v_pk_mul_f32 {vr(c+e,2)}, {vr(c+e,2)}, {vr(vRC+2*nb,2)}"))
                    else:
                        for e in range(4): R.append(V(4, f"v_mul_f32 v{c+e}, v{vRC+2*nb}, v{c+e}"))
            for nb in range(2):
                t = vOT + 4 * ((2*p+nb) % 4)
                for aa in range(2):
                    c = O + ((2*p+aa)*2+nb)*4
                    for e in range(2): R.append(V(4, f"v_cvt_pk_bf16_f32 v{t+2*aa+e}, v{c+2*e}, v{c+2*e+1}"))
            for nb in range(2):
                t = vOT + 4 * ((2*p+nb) % 4)
                R += [V(4, f"v_permlane16_swap_b32 v{t}, v{t+2}"), V(4, f"v_permlane16_swap_b32 v{t+1}, v{t+3}")]
            for nb in range(2):
                t = vOT + 4 * ((2*p+nb) % 4)
                if item == 0: ad, off = vOA, (p >> 1) * 16384
                else: ad, off = (vOA, SET0) if p < 2 else (vOA+1, 0)
                R.append((4, (lambda ad=ad, t=t, off=off, p=p, nb=nb: a.dsop(f"ds_write_b128 v{ad}, {vr(t,4)} offset:{off+nb*2048+(p&1)*1024}", 'ow')), 0))
            if zero:
                for e in range(0, 16, 2): R.append(V(4, f"v_mov_b64 {vr(O+16*p+e,2)}, 0"))
        if zero and msum:
            for e in range(0, 8, 2): R.append(V(4, f"v_mov_b64 {vr(vL+e,2)}, 0"))
        R[0] = (R[0][0], R[0][1], nbf)
        return R
    slow_paths = []
    def check(buf, full=True):
        lab = a.newlabel("slow")
        a(f"s_cbranch_vccnz {lab}" if not cfg.nokv else "s_nop 0"); a.label(lab + "_ret"); slow_paths.append((lab, buf, full))
    LA = cfg.LA
    def run(slots, valu, cap=1000):
        gaps = []
        for mf, own, nxt, mid, pre in slots:
            seq = own + nxt
            ex = len(mf) - 16
            for j in range(ex): gaps.append((mf[j], [], 4 if j == ex - 1 else 0))
            for i in range(8):
                rd = seq[i] if i < len(seq) else []
                f0 = (list(pre) if i == 8 - LA else []) + rd[:1]
                f1 = rd[1:] + [f for g, f in mid if g == i]
                gaps.append((mf[ex+2*i], f0, 4 * len(f0)))
                gaps.append((mf[ex+2*i+1], f1, 4 * len(f1) + (4 if i % 2 else 0)))
        marks = [0] + [i for i, v in enumerate(valu) if v[2] > 0] + [len(valu)]
        starts = [0] + [valu[i][2] for i in marks[1:-1]] + [len(gaps)]
        k = 0
        for sg in range(len(marks) - 1):
            g0, g1 = starts[sg], starts[sg+1]
            G = max(8.0, (sum(g[2] for g in gaps[g0:g1]) + sum(v[0] for v in valu[k:marks[sg+1]])) / (g1 - g0))
            used = 0
            for gi in range(g0, g1):
                m, fx, c = gaps[gi]
                m()
                for f in fx: f()
                here = c
                used = max(used, G * (gi - g0) - 6) + c
                while k < marks[sg+1] and (used + valu[k][0] / 2 <= G * (gi - g0 + 1) or here + valu[k][0] <= 8):
                    used += valu[k][0]; here += valu[k][0]; valu[k][1](); k += 1
        while k < len(valu): valu[k][1](); k += 1
    S = lambda t: (lambda: a(t))
    scal = [(0, S(f"s_add_u32 s{sSET}, s{sSET}, 1")), (1, S(f"s_cmp_eq_u32 s{sSET}, 3")),
            (2, S(f"s_cselect_b32 s{sDELTA}, s{sD2}, s{sD1}")), (3, S(f"s_cselect_b32 s{sSET}, 0, s{sSET}"))]
    kupd = [S(f"v_add_u32 v{KA}, s{sDELTA}, v{KA}")]
    vupd = [(4, S(f"v_add_u32 v{VA}, s{sDV}, v{VA}")), (5, S(f"v_add_u32 v{VA+1}, s{sDV}, v{VA+1}"))]
    dvupd = S(f"s_mov_b32 s{sDV}, s{sDELTA}")
    barf = S("s_barrier")
    k0, k1, v0r, v1r = kreads(0), kreads(1), vreads(0), vreads(1)
    xs = 2 if msum else 0

    qreads(0)
    a("s_barrier")
    stamp()
    for r in k0[:LA]: r[0]()
    zero = [V(4, f"v_mov_b64 {vr(r,2)}, 0") for r in list(range(O, O+64, 2)) + (list(range(vL, vL+8, 2)) if msum else [])]
    for v in zero[:12]: v[1]()
    a.dswait('q')
    run([(qk_list(0, first=True), k0[LA:], k1[:LA], [], [])], zero[12:])
    a("s_nop 5")
    for v in init_ops(0): v[1]()
    run([(qk_list(1), k1[LA:], k0[:LA], scal, kupd + [dvupd, barf])], ex_ops(0, chk=False, freshl=True))
    entry_ds = list(a.ds)
    a(".p2align 3")
    a.label("L_aloop")
    run([(qk_list(0), k0[LA:], v0r[:LA], [(0, S(f"s_add_u32 s{sCNT}, s{sCNT}, 1")), (2, S(f"s_and_b32 s3, s{sCNT}, 7"))], [barf]),
         (pv_list(0), v0r[LA:], k1[:LA], [], [])], ex_ops(1))
    check(1)
    run([(qk_list(1), k1[LA:], v1r[:LA], scal, []),
         (pv_list(1), v1r[LA:], k0[:LA], vupd + [(6, dvupd), (6, S("s_cmp_lg_u32 s3, 7"))], kupd + [barf])], ex_ops(0))
    check(0)
    assert a.ds == entry_ds, (a.ds, entry_ds)
    a("s_cbranch_scc1 L_aloop")
    a(f"s_add_u32 s{sCNT}, s{sCNT}, 1")
    a(f"s_cmp_eq_u32 s{sCNT}, 16"); a("s_cbranch_scc1 L_atail")
    qreads(1)
    ex = ex_ops(1)
    for v in ex[:10]: v[1]()
    a.dswait('q')
    run([(qk_list(0, first=True), k0[LA:], v0r[:LA], [], [barf]),
         (pv_list(0), v0r[LA:], v1r[:LA], [], [])], ex[10:] + init_ops(0, nbf=20))
    check(1, full=False)
    run([(pv_list(1), v1r[LA:], k1[:LA], scal + vupd, []),
         (qk_list(1), k1[LA:], k0[:LA], [], kupd + [dvupd, barf])],
        ex_ops(0, chk=False, freshl=True) + rcp_ops() + epi_ops(0, True, False, nbf=xs+14))
    a.dswait('ow')
    cstamp(sCNT, 8)
    a("s_branch L_aloop")
    a.label("L_atail")
    a.ds = list(entry_ds)
    a.dswait_all()
    a("s_barrier")
    for r in v0r[:LA]:
        for f in r: f()
    ex = ex_ops(1)
    for v in ex[:10]: v[1]()
    run([(pv_list(0), v0r[LA:], v1r[:LA], [], [])], ex[10:])
    check(1, full=False)
    a("s_nop 0")
    run([(pv_list(1), v1r[LA:], [], [], [])], rcp_ops(nbf=8))
    for v in epi_ops(1, False, True): v[1]()
    stamp()

    if cfg.abench: a("s_branch L_fin")
    a(f"s_lshl_b32 s3, s{sRH}, 13"); a(f"s_add_u32 s3, s3, {SET0}"); a(f"v_add_u32 v{AB}, s3, v{vLIN}")
    a(f"v_add_u32 v{AB+1}, 1024, v{AB}")
    for dq in range(4):
        a(f"s_xor_b32 s{sT0}, s{sG}, {dq}")
        a(f"s_lshr_b32 s{sT1}, s{sT0}, 1"); a(f"s_lshl_b32 s{sT1}, s{sT1}, 14"); a(f"s_add_u32 s{sT1}, s{sT1}, {SET0+16384}")
        a(f"s_and_b32 s{sT0}, s{sT0}, 1"); a(f"s_lshl_b32 s{sT0}, s{sT0}, 1"); a(f"s_add_u32 s{sT0}, s{sT0}, s{sHH}"); a(f"s_lshl_b32 s{sT0}, s{sT0}, 6")
        a(f"v_xor_b32 v{AA+2*dq}, s{sT0}, v{vTRB}")
        a(f"v_add_u32 v{AA+2*dq}, s{sT1}, v{AA+2*dq}")
        a(f"v_xor_b32 v{AA+2*dq+1}, 32, v{AA+2*dq}")
    a(f"s_mov_b32 s{sPH}, 1"); a(f"s_mov_b32 s{sTRIG}, -1")
    a(f"s_mov_b32 s{sSET}, 2"); a(f"s_mov_b32 s{sD1}, -49152"); a(f"s_mov_b32 s{sD2}, 98304")
    a("s_waitcnt lgkmcnt(0)")
    a("s_branch L_gemm")

    a.label("L_oepi")
    stamp()
    def inbox(dst, dq):
        a(f"s_xor_b32 s3, s{sGRP2}, {dq << 2}"); a("s_mul_i32 s3, s3, 49152")
        a(f"s_lshl_b32 s{dst}, s{sWAVE}, 12"); a(f"s_add_u32 s{dst}, s{dst}, s3"); a(f"s_add_u32 s{dst}, s{dst}, {EXCH + max(dq-1, 0)*16384}")
    k = 0
    for dq in range(1, 4):
        inbox(sT0, dq)
        for nb in range(4):
            t = 16 + 4 * k; k += 1
            for aa in range(2):
                c = ACC + ((2*dq+aa)*4+nb)*4
                a(f"v_cvt_pk_bf16_f32 v{t+2*aa}, v{c}, v{c+1}"); a(f"v_cvt_pk_bf16_f32 v{t+2*aa+1}, v{c+2}, v{c+3}")
            a(f"buffer_store_dwordx4 {vr(t,4)}, v{vLIN}, s[{S_WS}:{S_WS+3}], s{sT0} offen offset:{nb*1024} sc1")
    inbox(sT0, 0)
    a("v_and_b32 v4, 15, v0"); a("v_lshlrev_b32 v4, 12, v4")
    a(f"v_lshrrev_b32 v5, 8, v{vNAT}"); a("v_lshl_add_u32 v4, v5, 4, v4")
    a(f"s_lshl_b32 s{sT2}, s{sB}, 19"); a(f"s_lshl_b32 s3, s{sRH}, 18"); a(f"s_add_u32 s{sT2}, s{sT2}, s3")
    a(f"s_lshl_b32 s3, s{sBR}, 11"); a(f"s_add_u32 s{sT2}, s{sT2}, s3")
    a(f"s_lshl_b32 s3, s{sCT}, 9"); a(f"s_add_u32 s{sT2}, s{sT2}, s3")
    a(f"s_lshl_b32 s3, s{sG}, 7"); a(f"s_add_u32 s{sT2}, s{sT2}, s3")
    a(f"s_lshl_b32 s3, s{sHH}, 6"); a(f"s_add_u32 s{sT2}, s{sT2}, s3")
    a(f"v_lshlrev_b32 v5, 2, v0"); a(f"v_xor_b32 v6, s{sGRP2}, v5"); a("v_lshl_add_u32 v6, v6, 10, v5")
    a(f"s_lshl_b32 s{sT1}, s{sWAVE}, 7"); a(f"s_add_u32 s{sT1}, s{sT1}, {FLAG+256}")
    a(f"s_lshl_b32 s3, s{sGRP2}, 10"); a(f"s_add_u32 s{sT3}, s{sT1}, s3")
    a("v_mov_b32 v7, 1")
    a(f"s_mov_b32 s{sSPIN}, 0")
    a("s_mov_b64 exec, 14")
    a("s_waitcnt vmcnt(0)")
    a(f"buffer_store_dword v7, v6, s[{S_WS}:{S_WS+3}], s{sT1} offen sc1")
    stamp()
    a.label("L_x2poll")
    a(f"buffer_load_dword v8, v5, s[{S_WS}:{S_WS+3}], s{sT3} offen sc1")
    a(f"s_add_u32 s{sSPIN}, s{sSPIN}, 1")
    a("s_waitcnt vmcnt(0)")
    a("v_cmp_ne_u32 vcc, 1, v8")
    a("s_cbranch_vccz L_x2done")
    if cfg.psleep: a(f"s_sleep {cfg.psleep}")
    a(f"s_cmp_lt_u32 s{sSPIN}, 0x40000"); a("s_cbranch_scc1 L_x2poll")
    a.label("L_x2done")
    a("s_mov_b64 exec, -1")
    stamp()
    for dq in range(3):
        for nb in range(4):
            t = 16 + 4 * (dq*4+nb)
            a(f"buffer_load_dwordx4 {vr(t,4)}, v{vLIN}, s[{S_WS}:{S_WS+3}], s{sT0} offen offset:{nb*1024} sc1")
        if dq < 2: a(f"s_add_u32 s{sT0}, s{sT0}, 16384")
    a("s_mov_b32 s3, 0xffff0000")
    for dq in range(3):
        for nb in range(4):
            t = 16 + 4 * (dq*4+nb)
            a(f"s_waitcnt vmcnt({11 - (dq*4+nb) + (nb if dq == 2 else 0)})")
            for aa in range(2):
                c = ACC + (aa*4+nb)*4
                for h in range(2):
                    a(f"v_lshlrev_b32 v6, 16, v{t+2*aa+h}"); a(f"v_and_b32 v7, s3, v{t+2*aa+h}")
                    a(f"v_pk_add_f32 {vr(c+2*h,2)}, {vr(c+2*h,2)}, v[6:7]")
            if dq == 2:
                for aa in range(2):
                    c = ACC + (aa*4+nb)*4
                    a(f"v_cvt_pk_bf16_f32 v{t+2*aa}, v{c}, v{c+1}"); a(f"v_cvt_pk_bf16_f32 v{t+2*aa+1}, v{c+2}, v{c+3}")
                a("s_nop 1")
                a(f"v_permlane16_swap_b32 v{t}, v{t+2}"); a(f"v_permlane16_swap_b32 v{t+1}, v{t+3}")
                a(f"buffer_store_dwordx4 {vr(t,4)}, v4, s[{S_OUT}:{S_OUT+3}], s{sT2} offen")
                a(f"s_add_u32 s{sT2}, s{sT2}, 65536")
    a.label("L_fin")
    if cfg.prof:
        a("s_waitcnt vmcnt(0)")
        stamp()
        a(f"s_cmp_lg_u32 s{sWAVE}, 0"); a("s_cbranch_scc1 L_end2")
        a("s_lshl_b32 s3, s2, 6"); a(f"s_add_u32 s3, s3, {48*M}")
        a("s_mov_b64 exec, 1")
        for i in range(nst[0]):
            a(f"v_mov_b32 v4, s{sSTAMP+2*i}")
            a(f"buffer_store_dword v4, off, s[{S_WS}:{S_WS+3}], s3 offset:{4*i}")
            a("s_nop 1")
        a.label("L_end2")
    a("s_endpgm")

    a.label("L_gtrig")
    a(f"s_mov_b64 s[{sEX}:{sEX+1}], exec"); a("s_mov_b64 exec, 1")
    a(f"v_mov_b32 v{vt0}, 1")
    a(f"s_lshl_b32 s{sT0}, s{sWAVE}, 2"); a(f"s_add_u32 s{sT0}, s{sT0}, s{sGRP1}")
    a("s_waitcnt vmcnt(0)")
    a(f"buffer_store_dword v{vt0}, off, s[{S_DBG}:{S_DBG+3}], s{sT0} sc1")
    a(f"s_mov_b64 exec, s[{sEX}:{sEX+1}]")
    a("s_nop 3")
    a("s_branch L_gtrig_ret")
    for lab, buf, full in slow_paths:
        a.label(lab)
        a("s_nop 7")
        for v in max_ops(buf): v[1]()
        for nb in range(2): a(f"v_max_f32 v{vMX+nb}, 0, v{vMX+nb}")
        for nb in range(2): a(f"v_sub_f32 v{vTM+nb}, 0, v{vMX+nb}")
        for nb in range(2): a(f"v_exp_f32 v{vTM+nb}, v{vTM+nb}")
        for nb in range(2):
            for bb in ((0, 1) if full else (buf,)):
                for aa in range(2):
                    for r in range(4): a(f"v_sub_f32 v{sreg(bb,aa,nb)+r}, v{sreg(bb,aa,nb)+r}, v{vMX+nb}")
            if full:
                for r in range(4): a(f"v_sub_f32 v{NEG+4*nb+r}, v{NEG+4*nb+r}, v{vMX+nb}")
            if msum:
                for r in range(4): a(f"v_mul_f32 v{vL+4*nb+r}, v{vL+4*nb+r}, v{vTM+nb}")
            else:
                a(f"v_mul_f32 v{vL+2*(1-buf)+nb}, v{vL+2*(1-buf)+nb}, v{vTM+nb}")
        for mb in range(8):
            for nb in range(2):
                for r in range(4): a(f"v_mul_f32 v{O+(mb*2+nb)*4+r}, v{O+(mb*2+nb)*4+r}, v{vTM+nb}")
        for v in ex_ops(buf, chk=False): v[1]()
        a("s_nop 1")
        a(f"s_branch {lab}_ret")

    if cfg.drop:
        i0 = a.L.index("L_aloop:"); i1 = next(i for i in range(i0, len(a.L)) if "s_cbranch_scc1 L_aloop" in a.L[i])
        a.L = a.L[:i0] + [l for l in a.L[i0:i1] if not any(d in l for d in cfg.drop.split("|"))] + a.L[i1:]
    k = NAME + "_kernel"
    return header(["; @launch grid=(256,1,1) block=(512,1,1) lds=163840"]) + kernel_begin(k) + a.text() + \
        '.section .rodata,"a"\n.p2align 6\n' + descriptor(k, 256)

if __name__ == "__main__":
    out = sys.argv[1] if len(sys.argv) > 1 else f"cdna_kernels/{NAME}.s"
    kw = {}
    for x in sys.argv[2:]:
        k, v = x.split("=", 1)
        try: v = eval(v)
        except Exception: pass
        kw[k] = v
    open(out, "w").write(gen(Cfg(**kw)))
    print("wrote", out)
```

```python
import sys
sys.path.insert(0, "tools")
from mb_stream import HEAD, TAIL, NAME
K = 1024; M = 1 << 20

def gen(npf, bytes_per_cu, stride, inst, batch, then_read=False, rflags='', glc='', off=0):
    nw = max(npf, 4)
    L = []; a = L.append
    a("s_load_dwordx2 s[4:5], s[0:1], 96")
    a("s_load_dwordx2 s[6:7], s[0:1], 88")
    a("s_memrealtime s[40:41]")
    a("s_waitcnt lgkmcnt(0)")
    a("s_mov_b32 s8, s4"); a("s_mov_b32 s9, s5"); a("s_mov_b32 s10, 0x10000000"); a("s_mov_b32 s11, 0x00020000")
    a("s_mov_b32 s12, s6"); a("s_mov_b32 s13, s7"); a("s_mov_b32 s14, 65536"); a("s_mov_b32 s15, 0x00020000")
    a("v_lshrrev_b32 v1, 6, v0"); a("s_nop 0"); a("v_readfirstlane_b32 s16, v1")
    a("v_lshlrev_b32 v2, 4, v0")
    a("s_lshl_b32 s17, s16, 14")
    a(f"s_mul_i32 s20, s2, {bytes_per_cu}")
    if npf:
        per_wave = bytes_per_cu // npf
        a(f"s_cmp_ge_u32 s16, {npf}"); a("s_cbranch_scc1 L_skip")
        a(f"s_mul_i32 s21, s16, {per_wave}")
        a("s_add_u32 s21, s21, s20")
        a("s_add_u32 s22, s4, s21"); a("s_addc_u32 s23, s5, 0")
        n = per_wave // (stride * batch)
        a(f"s_mov_b32 s18, {n}")
        a("L_pf:")
        dst = {'s_load_dword': 's48', 's_load_dwordx2': 's[48:49]', 's_load_dwordx16': 's[48:63]'}[inst]
        for b in range(batch):
            a(f"{inst} {dst}, s[22:23], {b*stride+off} {glc}")
        a(f"s_add_u32 s22, s22, {stride*batch}"); a("s_addc_u32 s23, s23, 0")
        a("s_sub_u32 s18, s18, 1"); a("s_cmp_lg_u32 s18, 0"); a("s_cbranch_scc1 L_pf")
        a("s_waitcnt lgkmcnt(0)")
        a("L_skip:")
    a("s_barrier")
    a("s_memrealtime s[44:45]")
    a("s_waitcnt lgkmcnt(0)")
    if then_read:
        a("s_cmp_ge_u32 s16, 4"); a("s_cbranch_scc1 L_skip2")
        a(f"s_mov_b32 s18, {bytes_per_cu // 4096 // 8}")
        a("L_rd:")
        for u in range(8):
            a(f"s_add_u32 m0, s17, {u*1024}"); a("s_nop 0")
            a(f"buffer_load_dwordx4 v2, s[8:11], s20 offen {rflags} lds")
            a("s_add_u32 s20, s20, 4096")
            a("s_waitcnt vmcnt(7)")
        a("s_sub_u32 s18, s18, 1"); a("s_cmp_lg_u32 s18, 0"); a("s_cbranch_scc1 L_rd")
        a("L_skip2:")
    a("s_waitcnt vmcnt(0)")
    a("s_barrier")
    a("s_memrealtime s[42:43]")
    a("s_waitcnt lgkmcnt(0)")
    a("v_mov_b32 v4, s40"); a("v_mov_b32 v5, s44"); a("v_mov_b32 v6, s42"); a("v_mov_b32 v7, 1")
    a("s_lshl_b32 s3, s2, 4")
    a("v_mov_b32 v3, s3")
    a("v_cmp_eq_u32 vcc, 0, v0")
    a("s_and_saveexec_b64 s[30:31], vcc")
    a("s_cbranch_execz L_end")
    a("buffer_store_dwordx4 v[4:7], v3, s[12:15], 0 offen")
    a("s_waitcnt vmcnt(0)")
    a("L_end:")
    return HEAD.format(n=NAME, nt=nw*64, lds=65536, grid=256) + "\n".join(L) + TAIL.format(n=NAME, vg=32, ao=32)

CASES = {
  "no pf, read 64K nt": lambda: gen(0, 64*K, 128, 's_load_dword', 16, True, 'nt'),
  "pf 1w dword s64, read": lambda: gen(1, 64*K, 64, 's_load_dword', 16, True, 'nt'),
  "pf 2w dword s64, read": lambda: gen(2, 64*K, 64, 's_load_dword', 16, True, 'nt'),
  "pf 4w dword s64, read": lambda: gen(4, 64*K, 64, 's_load_dword', 16, True, 'nt'),
  "pf 4w dword s64 b8": lambda: gen(4, 64*K, 64, 's_load_dword', 8, True, 'nt'),
  "pf 8w dword s64, read": lambda: gen(8, 64*K, 64, 's_load_dword', 16, True, 'nt'),
  "pf 4w x2 s64, read": lambda: gen(4, 64*K, 64, 's_load_dwordx2', 16, True, 'nt'),
  "pf 4w x16 s64, read": lambda: gen(4, 64*K, 64, 's_load_dwordx16', 16, True, 'nt'),
  "pf 4w dword s128, read": lambda: gen(4, 64*K, 128, 's_load_dword', 16, True, 'nt'),
  "pf 4w x16 off32 s128": lambda: gen(4, 64*K, 128, 's_load_dwordx16', 16, True, 'nt', off=32),
  "pf 4w x2 off60 s128": lambda: gen(4, 64*K, 128, 's_load_dwordx2', 16, True, 'nt', off=60),
}
if __name__ == "__main__":
    if len(sys.argv) > 1 and sys.argv[1] == "check":
        import subprocess
        for name, f in CASES.items():
            open("mb.s", "w").write(f())
            r = subprocess.run(["clang", "-x", "assembler", "-target", "amdgcn-amd-amdhsa", "-mcpu=gfx950", "-c", "mb.s", "-o", "mb.o"], capture_output=True, text=True)
            assert r.returncode == 0, (name, r.stderr)
        print("ok"); sys.exit(0)
    import numpy as np, hx
    c = hx.Ctx()
    def stamps():
        d = hx.d2h(c.dbg.ptr, np.uint32, (256, 4)).astype(np.int64)
        return (np.median(d[:, 1] - d[:, 0]) * 0.01, np.median(d[:, 2] - d[:, 1]) * 0.01)
    for name, f in CASES.items():
        open("mb.s", "w").write(f())
        k = hx.build("mb.s")
        out = []
        for cold in (True, False):
            ts, res = c.time(k, n=7, cold=cold, after=stamps)
            res = np.array(res)
            out.append(f"{'cold' if cold else 'warm'}: pf {np.median(res[:,0]):6.2f} read {np.median(res[:,1]):6.2f}")
        print(f"{name:48s} " + " | ".join(out), flush=True)
        k[0].unload()
```
